```python
import torch

def _softmax(x, axis=-1):
    return torch.softmax(x, dim=axis)
def _gelu(x):
    return torch.nn.functional.gelu(x, approximate="tanh")
def _silu(x):
    return torch.nn.functional.silu(x)
def _sigmoid(x):
    return torch.sigmoid(x)
def _layernorm(x, axis=-1, eps=1e-5):
    m = x.mean(dim=axis, keepdim=True)
    v = x.var(dim=axis, keepdim=True, unbiased=False)
    return (x - m) / torch.sqrt(v + eps)
def _scatter_add(tgt, idx, src, axis=0):
    return tgt.clone().index_add_(axis, idx, src)
def _segment_sum(src, seg, n):
    out = torch.zeros((n,) + src.shape[1:], dtype=src.dtype)
    return out.index_add_(0, seg, src)
def _pad(x, pw):
    flat = tuple(v for pair in reversed(pw) for v in pair)
    return torch.nn.functional.pad(x, flat)

kernel_name = 'concat_heads__compressed_kv_cla__ssm_conv_s4__prompt'

def setup_inputs():

    _w = (lambda a: (lambda t: t.to(torch.bfloat16) if t.is_floating_point() else t)(torch.as_tensor(a)))
    def _A_setup():
        B, H, Sq, Sk, D, M = 1, 32, 2048, 2048, 128, 512
        Dc = 4 * D
        return {
            "x": _w((lambda *s: torch.randn(*s, dtype=torch.bfloat16) * 3.2)(B, Sq, M)),
            "c_kv": _w((lambda *s: torch.randn(*s, dtype=torch.bfloat16) * 0.1)(B, Sk, Dc)),
            "w_q": _w((lambda *s: torch.randn(*s, dtype=torch.bfloat16) * 6.4)(M, H, D) * (M ** -0.5)),
            "w_uk": _w((lambda *s: torch.randn(*s, dtype=torch.bfloat16) * 6.4)(Dc, H, D) * (Dc ** -0.5)),
            "w_uv": _w((lambda *s: torch.randn(*s, dtype=torch.bfloat16) * 0.1)(Dc, H, D) * (Dc ** -0.5)),
            "w_o": _w((lambda *s: torch.randn(*s, dtype=torch.bfloat16) * 0.1)(H, D, M) * ((H * D) ** -0.5)),
        }
    _A_in = _A_setup()

    def _B_setup():
        B, L, D, N = 1, 2048, 512, 128
        A_re = -(lambda _x: torch.exp(torch.as_tensor(_x)))((lambda *s: torch.randn(*s, dtype=torch.bfloat16) * 3.2)(D, N))
        A_im = torch.pi * (lambda *s: torch.randn(*s, dtype=torch.bfloat16) * 0.05)(D, N)
        B_re = (lambda *s: torch.randn(*s, dtype=torch.bfloat16) * 0.1)(D, N)
        B_im = (lambda *s: torch.randn(*s, dtype=torch.bfloat16) * 0.1)(D, N)
        C_re = (lambda *s: torch.randn(*s, dtype=torch.bfloat16) * 0.1)(D, N)
        C_im = (lambda *s: torch.randn(*s, dtype=torch.bfloat16) * 0.1)(D, N)
        log_dt = (lambda *s: torch.randn(*s, dtype=torch.bfloat16) * 0.05)(D) * 0.5 - 4.0
        Dskip = (lambda *s: torch.randn(*s, dtype=torch.bfloat16) * 0.05)(D)
        return {
            "u": _w((lambda *s: torch.randn(*s, dtype=torch.bfloat16) * 0.05)(B, L, D)),
            "A_re": _w(A_re),
            "A_im": _w(A_im),
            "B_re": _w(B_re),
            "B_im": _w(B_im),
            "C_re": _w(C_re),
            "C_im": _w(C_im),
            "log_dt": _w(log_dt),
            "Dskip": _w(Dskip),
        }
    _B_in = _B_setup()

    return {
        "A_x": _A_in["x"],
        "A_c_kv": _A_in["c_kv"],
        "A_w_q": _A_in["w_q"],
        "A_w_uk": _A_in["w_uk"],
        "A_w_uv": _A_in["w_uv"],
        "A_w_o": _A_in["w_o"],
        "B_u": _B_in["u"],
        "B_A_re": _B_in["A_re"],
        "B_A_im": _B_in["A_im"],
        "B_B_re": _B_in["B_re"],
        "B_B_im": _B_in["B_im"],
        "B_C_re": _B_in["C_re"],
        "B_C_im": _B_in["C_im"],
        "B_log_dt": _B_in["log_dt"],
        "B_Dskip": _B_in["Dskip"],
    }

def reference(A_x, A_c_kv, A_w_q, A_w_uk, A_w_uv, A_w_o, B_u, B_A_re, B_A_im, B_B_re, B_B_im, B_C_re, B_C_im, B_log_dt, B_Dskip):
    def _A_ref(x, c_kv, w_q, w_uk, w_uv, w_o):
        B, Sq, M = x.shape[0], x.shape[1], x.shape[2]
        Sk = c_kv.shape[1]
        H, D = w_q.shape[1], w_q.shape[2]
        q = torch.einsum("bqm,mhd->bhqd", x, w_q)
        k = torch.einsum("bkc,chd->bhkd", c_kv, w_uk)
        v = torch.einsum("bkc,chd->bhkd", c_kv, w_uv)
        scores = torch.einsum("bhqd,bhkd->bhqk", q, k) * (D ** -0.5)
        off = Sk - Sq
        qi = torch.arange(Sq)[:, None]
        kj = torch.arange(Sk)[None, :]
        cmask = kj <= (qi + off)
        scores = torch.where(cmask[None, None], scores, -1e9)
        p = _softmax(scores, axis=-1)
        ctx = torch.einsum("bhqk,bhkd->bhqd", p, v)
        return torch.einsum("bhqd,hdm->bqm", ctx, w_o)

    def _B_ref(u, A_re, A_im, B_re, B_im, C_re, C_im, log_dt, Dskip):
        Bsz, L, D = u.shape
        dt = torch.exp(log_dt)[:, None]
        A = A_re + 1j * A_im
        Bc = B_re + 1j * B_im
        Cc = C_re + 1j * C_im
        logdA = dt * A
        dB = dt * Bc
        l = (lambda x, dt: x.to(dt))(torch.arange(L), A_re.dtype)
        P = torch.exp(logdA[:, :, None] * l[None, None, :])
        K = torch.einsum("dn,dnl,dn->dl", Cc, P, dB).real
        L2 = 2 * L
        Kp = _pad(K, ((0, 0), (0, L)))
        up = (lambda x, *d: x.permute(*d))(u, 0, 2, 1)
        up = _pad(up, ((0, 0), (0, 0), (0, L)))
        Kf = (lambda x, axes=(-2,-1): torch.fft.rfft2(x.float(), dim=axes))(Kp[:, None, :], axes=(-2, -1))
        Uf = (lambda x, axes=(-2,-1): torch.fft.rfft2(x.float(), dim=axes))(up[:, :, None, :], axes=(-2, -1))
        Yf = Uf * Kf[None, :, :, :]
        y = (lambda x, s, axes=(-2,-1): torch.fft.irfft2(x, s=s, dim=axes).to(torch.bfloat16))(Yf, (1, L2), axes=(-2, -1))[:, :, 0, :L]
        y = (lambda x, *d: x.permute(*d))(y, 0, 2, 1) + u * Dskip[None, None, :]
        return y

    a = _A_ref(A_x, A_c_kv, A_w_q, A_w_uk, A_w_uv, A_w_o)
    b = _B_ref(B_u, B_A_re, B_A_im, B_B_re, B_B_im, B_C_re, B_C_im, B_log_dt, B_Dskip)
    return torch.concatenate([a, b], axis=-1)
```

```python
from common import *

O_ = 16
S_ = [80, 112]
P_ = 144
KF = 160
VF = 176
KA = 192
VA = 200
KD = 204
VD = 12
M_ = 2
ONES = 4
MX = 3
MX1 = 8
LA = 32
T_ = 144
NEG_INF = 0xff800000
SPARE = 131072
OPT = dict(prio=1, thr=0x42800000)

def gen_attn(a, name="attn_kernel"):
    kernel_header(a, name)
    a("s_cmp_ge_u32 s2, 256")
    a("s_cbranch_scc1 " + name + "_done")
    a("s_load_dwordx2 s[46:47], s[0:1], 136")
    a("v_and_b32 v1, 63, v0")
    a("v_lshrrev_b32 v14, 6, v0")
    a("s_nop 0")
    a("v_readfirstlane_b32 s24, v14")
    a("s_lshr_b32 s25, s24, 2")
    a("s_and_b32 s26, s24, 3")
    a("s_and_b32 s27, s2, 7")
    a("s_lshl_b32 s27, s27, 2")
    a("s_lshr_b32 s28, s2, 3")
    a("s_and_b32 s28, s28, 3")
    a("s_add_u32 s27, s27, s28")
    a("s_lshr_b32 s28, s2, 5")
    a("s_lshl_b32 s29, s27, 19")
    a("v_and_b32 v10, 31, v1")
    a("v_lshrrev_b32 v11, 5, v1")
    a("s_lshl_b32 s30, s25, 16")
    a(f"v_lshlrev_b32 v{VD}, 4, v1")
    a(f"v_add_u32 v{KA}, s30, v{VD}")
    a("s_lshl_b32 s32, s25, 14")
    a("s_lshl_b32 s33, s26, 12")
    a("s_add_u32 s32, s32, s33")
    a("s_add_u32 s32, s32, s29")
    a(f"s_add_u32 s33, s32, {WS_VT}")
    a(f"s_add_u32 s32, s32, {WS_K}")
    a("s_lshl_b32 s34, s26, 12")
    a("s_add_u32 s34, s34, s30")
    a("s_add_u32 s35, s34, 32768")
    a("s_mov_b32 s36, 0")
    a("s_sub_u32 s37, 15, s28")
    a("s_waitcnt lgkmcnt(0)")
    srd(a, 16, 46, WS_BYTES)

    def dma_k(q, soff, buf):
        return ([f"s_add_u32 m0, s34, {buf*16384}", "s_nop 0"] if q == 0 else []) + [
                f"buffer_load_dwordx4 v{VD}, s[16:19], {soff} offen offset:{q*1024} lds"]
    def dma_v(q, soff, buf):
        return ([f"s_add_u32 m0, s35, {buf*16384}", "s_nop 0"] if q == 0 else []) + [
                f"buffer_load_dwordx4 v{VD}, s[16:19], {soff} offen offset:{q*1024} lds"]

    for q in range(4):
        for op in dma_k(q, "s32", 0): a(op)
    a("s_lshl_b32 s39, s37, 2")
    a("s_add_u32 s39, s39, s26")
    a("s_lshl_b32 s39, s39, 13")
    a("s_add_u32 s39, s39, s29")
    a(f"s_add_u32 s39, s39, {WS_Q}")
    for t in range(4):
        a(f"buffer_load_dwordx4 {ar(4*t,4)}, v{VD}, s[16:19], s39 offen offset:{1024*t}")
    a("s_add_u32 s39, s39, 4096")
    for t in range(4, 8):
        a(f"buffer_load_dwordx4 {ar(4*t,4)}, v{VD}, s[16:19], s39 offen offset:{1024*(t-4)}")
    if OPT['prio']:
        a("s_cmp_eq_u32 s25, 0")
        a(f"s_cbranch_scc1 {name}_np")
        a("s_setprio 1")
        a.label(name + "_np")
    a("s_mov_b32 s40, 0x3DB504F3")
    a("s_mov_b32 s41, 0x3FB8AA3B")
    a(f"s_mov_b32 s42, 0x{OPT['thr']:08x}")
    for i in range(4): a(f"v_mov_b32 v{ONES+i}, 0x3f803f80")
    a("s_lshl_b32 s43, s26, 5")
    a("s_lshl_b32 s44, s25, 6")
    a("s_sub_i32 s43, s43, s44")
    a("v_add_u32 v9, s43, v10")
    a("v_lshlrev_b32 v14, 2, v11")
    a("v_sub_u32 v9, v9, v14")
    for r in range(64): a(f"v_mov_b32 v{O_+r}, 0")
    a(f"v_mov_b32 v{M_}, 0xf149f2ca")
    for r in range(16): a(f"v_accvgpr_write_b32 a{LA+r}, 0")
    a("s_mov_b32 s45, 0")
    a("s_lshl_b32 s51, s26, 13")
    a(f"s_add_u32 s51, s51, {SPARE}")
    a("s_sub_u32 s51, s51, s30")
    a("s_waitcnt vmcnt(0)")
    a("s_barrier")
    a(f"s_add_u32 s43, s29, {WS_Q}")
    for q in range(4):
        for op in dma_v(q, "s33", 0): a(op)
    a("s_add_u32 s38, s32, 32768")
    for q in range(4):
        for op in dma_k(q, "s38", 1): a(op)
    a("s_lshl_b32 s39, s28, 15")
    a("s_lshl_b32 s44, s24, 12")
    a("s_add_u32 s39, s39, s44")
    a("s_add_u32 s39, s39, s43")
    a(f"s_add_u32 s44, s44, {SPARE}")
    for q in range(4):
        a(f"s_add_u32 m0, s44, {q*1024}")
        a(f"s_add_u32 s50, s39, {q*1024}")
        a(f"buffer_load_dwordx4 v{VD}, s[16:19], s50 offen lds")

    def kread(kt, t, buf, slot):
        a(f"ds_read_b128 {vr(KF+4*slot,4)}, v{KA} offset:{buf*16384+kt*8192+t*1024}")
    def vread(db, s, buf, slot):
        a(f"ds_read_b128 {vr(VF+4*slot,4)}, v{KA} offset:{32768+buf*16384+s*4096+db*1024}")

    def R_ops(S):
        ops = []
        for g0 in range(0, 32, 4):
            rs = [S + g0 + i for i in range(4)]
            for r in rs: ops.append(f"v_cvt_pk_bf16_f32 v{r}, 0, v{r}")
            for r in rs: ops.append(f"v_mul_f32 v{r}, s40, v{r}")
            for r in rs: ops.append(f"v_cvt_pk_bf16_f32 v{r}, 0, v{r}")
            if g0 == 0:
                ops.append(f"v_max_f32 v{MX}, v{rs[0]}, v{rs[1]}")
                ops.append(f"v_max_f32 v{MX1}, v{rs[2]}, v{rs[3]}")
            else:
                ops.append(f"v_max3_f32 v{MX}, v{rs[0]}, v{rs[1]}, v{MX}")
                ops.append(f"v_max3_f32 v{MX1}, v{rs[2]}, v{rs[3]}, v{MX1}")
        ops.append(f"v_max_f32 v{MX}, v{MX}, v{MX1}")
        ops.append(f"v_mov_b32 v{MX1}, v{MX}")
        ops.append("s_nop 1")
        ops.append(f"v_permlane32_swap_b32 v{MX}, v{MX1}")
        ops.append(f"v_max_f32 v{MX}, v{MX}, v{MX1}")
        ops.append(f"v_mul_f32 v{MX}, s41, v{MX}")
        ops.append(f"v_add_f32 v{MX1}, s42, v{M_}")
        ops.append(f"v_cmp_gt_f32 vcc, v{MX}, v{MX1}")
        return ops
    def E_ops(S):
        ops = []
        for g0 in range(0, 32, 4):
            rs = [S + g0 + i for i in range(4)]
            for r in rs: ops.append(f"v_fma_f32 v{r}, v{r}, s41, -v{M_}")
            for r in rs: ops.append(f"v_exp_f32 v{r}, v{r}")
            ops.append(f"v_cvt_pk_bf16_f32 v{P_+g0//2}, v{rs[0]}, v{rs[1]}")
            ops.append(f"v_cvt_pk_bf16_f32 v{P_+g0//2+1}, v{rs[2]}, v{rs[3]}")
        out = []
        groups = [ops[i:i+10] for i in range(0, len(ops), 10)]
        pend = []
        for gops in groups:
            out += gops[:4] + pend + gops[4:8]
            pend = gops[8:]
        out += ["s_nop 0"] + pend
        return out
    def mask_block(S):
        a(f"v_mov_b32 v14, 0x{NEG_INF:08x}")
        for g0 in range(0, 32, 8):
            for i in range(8):
                e = g0 + i; kt, r = e // 16, e % 16
                cst = (r & 3) + 8 * (r >> 2) + 32 * kt
                a(f"v_cmp_gt_i32 s[{60+2*i}:{61+2*i}], {cst}, v9")
            a("s_nop 1")
            for i in range(8):
                e = g0 + i
                a(f"v_cndmask_b32 v{S+e}, v{S+e}, v14, s[{60+2*i}:{61+2*i}]")
    def rescale(tag):
        lab = f"{name}_nors{tag}"
        a(f"s_cbranch_vccz {lab}")
        a("s_nop 7")
        a("s_nop 7")
        a(f"v_max_f32 v{MX}, v{MX}, v{M_}")
        a(f"v_sub_f32 v{MX1}, v{M_}, v{MX}")
        a(f"v_exp_f32 v{MX1}, v{MX1}")
        a(f"v_mov_b32 v{M_}, v{MX}")
        for r in range(64): a(f"v_mul_f32 v{O_+r}, v{O_+r}, v{MX1}")
        a(f"v_accvgpr_read_b32 v14, a{LA}")
        a("s_nop 0")
        a(f"v_mul_f32 v14, v14, v{MX1}")
        a("s_nop 0")
        for r in range(16): a(f"v_accvgpr_write_b32 a{LA+r}, v14")
        a("s_nop 1")
        a.label(lab)

    def emit_phase(kind, Sdst, buf, valu, extra, lead_valu=0):
        if kind == "qk":
            lst = [(kt, t) for kt in range(2) for t in range(8)]
            rd = lambda i: kread(lst[i][0], lst[i][1], buf, i % 4)
        else:
            lst = [(db, s) for s in range(4) for db in range(4)]
            rd = lambda i: vread(lst[i][0], lst[i][1], buf, i % 4)
        rd(0); rd(1)
        vi = 0
        for _ in range(lead_valu):
            if vi < len(valu): a(valu[vi]); vi += 1
        remv = len(valu) - vi
        nsl = 16 if kind == "qk" else 20
        sl = 0
        def fill():
            nonlocal vi, sl
            sl += 1
            target = lead_valu + (remv * sl + nsl - 1) // nsl
            while vi < min(target, len(valu)):
                a(valu[vi]); vi += 1
        for i in range(16):
            if i % 2 == 0:
                if i + 2 < 16:
                    rd(i + 2); rd(i + 3)
                    a("s_waitcnt lgkmcnt(2)")
                else:
                    a("s_waitcnt lgkmcnt(0)")
            if kind == "qk":
                kt, t = lst[i]
                acc = vr(Sdst + 16 * kt, 16)
                a(f"v_mfma_f32_32x32x16_bf16 {acc}, {vr(KF+4*(i%4),4)}, {ar(4*t,4)}, {'0' if t == 0 else acc}")
            else:
                db, s = lst[i]
                acc = vr(O_ + 16 * db, 16)
                a(f"v_mfma_f32_32x32x16_bf16 {acc}, {vr(VF+4*(i%4),4)}, {vr(P_+4*s,4)}, {acc}")
            for op in extra.get(i, []): a(op)
            fill()
            if kind == "pv" and i % 4 == 3:
                s = lst[i][1]
                a(f"v_mfma_f32_32x32x16_bf16 {ar(LA,16)}, {vr(ONES,4)}, {vr(P_+4*s,4)}, {ar(LA,16)}")
                fill()
        while vi < len(valu):
            a(valu[vi]); vi += 1

    emit_phase("qk", S_[0], 0, [], {})
    a("s_nop 15")
    for op in R_ops(S_[0]): a(op)

    def body(p):
        a.label(f"{name}_body{p}")
        a("s_cmp_eq_u32 s45, s37")
        a("s_cselect_b32 s54, 1, 0")
        a("s_cselect_b32 s53, s28, s37")
        a("s_add_u32 s52, s45, 1")
        a("s_cmp_eq_u32 s54, 1")
        a("s_cselect_b32 s52, 0, s52")
        a("s_add_u32 s55, s52, 1")
        a("s_cmp_eq_u32 s52, s53")
        a("s_cselect_b32 s55, 0, s55")
        a("s_lshl_b32 s39, s52, 15")
        a("s_add_u32 s39, s39, s33")
        a("s_lshl_b32 s38, s55, 15")
        a("s_add_u32 s38, s38, s32")
        a("s_waitcnt vmcnt(0)")
        a("s_barrier")
        rescale(f"b{p}")
        a("s_cmp_eq_u32 s54, 0")
        a(f"s_cbranch_scc1 {name}_nq{p}")
        a(f"v_add_u32 v14, s51, v{KA}")
        for t in range(8):
            a(f"ds_read_b128 {ar(4*t,4)}, v14 offset:{1024*t}")
        a("s_waitcnt lgkmcnt(0)")
        a.label(f"{name}_nq{p}")
        extra = {}
        for q in range(4): extra.setdefault(1 + 2 * q, []).extend(dma_v(q, "s39", 1 - p))
        emit_phase("qk", S_[1 - p], 1 - p, E_ops(S_[p]), extra, lead_valu=8)
        a("s_add_u32 s43, s36, s54")
        a("s_cmp_eq_u32 s52, s53")
        a("s_cselect_b32 s44, s43, 0")
        a("s_cmp_eq_u32 s44, 1")
        a(f"s_cbranch_scc1 {name}_nk{p}")
        for q in range(4):
            for op in dma_k(q, "s38", p): a(op)
        a.label(f"{name}_nk{p}")
        a("s_cmp_lg_u32 s52, s53")
        a(f"s_cbranch_scc1 {name}_nm{p}")
        a("s_nop 15")
        mask_block(S_[1 - p])
        a.label(f"{name}_nm{p}")
        emit_phase("pv", None, p, ["s_nop 3"] + R_ops(S_[1 - p]), {}, lead_valu=0)
        a(f"s_mov_b32 s56, {p}")
        a("s_cmp_eq_u32 s54, 1")
        a(f"s_cbranch_scc1 {name}_merge")
        a("s_mov_b32 s45, s52")
        a.label(f"{name}_cont{p}")
        a("s_cmp_eq_u32 s45, s37")
        a("s_cselect_b32 s43, s36, 0")
        a("s_cmp_eq_u32 s43, 1")
        a(f"s_cbranch_scc1 {name}_tail{1-p}")
        if p == 1: a(f"s_branch {name}_body0")
    body(0)
    body(1)
    def tail(p):
        a.label(f"{name}_tail{p}")
        a("s_waitcnt vmcnt(0)")
        a("s_barrier")
        rescale(f"t{p}")
        for op in E_ops(S_[p]): a(op)
        emit_phase("pv", None, p, [], {})
        a(f"s_mov_b32 s56, {p}")
        if p == 0: a(f"s_branch {name}_merge")
    tail(0)
    tail(1)
    a.label(name + "_merge")
    a("s_waitcnt lgkmcnt(0)")
    a("s_barrier")
    a("v_lshlrev_b32 v14, 4, v1")
    a("s_lshl_b32 s43, s24, 12")
    a(f"s_add_u32 s43, s43, {SPARE}")
    a("s_lshl_b32 s44, s56, 14")
    a("s_add_u32 s44, s44, s35")
    a("s_xor_b32 s57, s56, 1")
    a("s_lshl_b32 s57, s57, 14")
    a("s_add_u32 s57, s57, s34")
    a(f"v_add_u32 v{T_+10}, s43, v14")
    a(f"v_add_u32 v{T_+11}, s44, v14")
    a(f"v_add_u32 v{T_+12}, s57, v14")
    a(f"v_xor_b32 v{T_+13}, 0x4000, v{T_+10}")
    a(f"v_xor_b32 v{T_+14}, 0x10000, v{T_+11}")
    a(f"v_xor_b32 v{T_+15}, 0x10000, v{T_+12}")
    a("s_nop 7")
    a(f"v_accvgpr_read_b32 v{T_+3}, a{LA}")
    a(f"v_mov_b32 v{T_+2}, v{M_}")
    a("s_cmp_eq_u32 s25, 0")
    a(f"s_cbranch_scc0 {name}_wr1")
    for k in range(4): a(f"ds_write_b128 v{T_+10}, {vr(O_+32+4*k,4)} offset:{1024*k}")
    for k in range(4): a(f"ds_write_b128 v{T_+11}, {vr(O_+48+4*k,4)} offset:{1024*k}")
    a(f"s_branch {name}_wrd")
    a.label(name + "_wr1")
    for k in range(4): a(f"ds_write_b128 v{T_+10}, {vr(O_+4*k,4)} offset:{1024*k}")
    for k in range(4): a(f"ds_write_b128 v{T_+11}, {vr(O_+16+4*k,4)} offset:{1024*k}")
    a("s_nop 1")
    for r in range(32): a(f"v_mov_b32 v{O_+r}, v{O_+32+r}")
    a.label(name + "_wrd")
    a(f"ds_write_b64 v{T_+12}, v[{T_+2}:{T_+3}]")
    a("s_waitcnt lgkmcnt(0)")
    a("s_barrier")
    a(f"ds_read_b64 v[{T_+4}:{T_+5}], v{T_+15}")
    for k in range(4): a(f"ds_read_b128 {vr(O_+32+4*k,4)}, v{T_+13} offset:{1024*k}")
    for k in range(4): a(f"ds_read_b128 {vr(O_+48+4*k,4)}, v{T_+14} offset:{1024*k}")
    a("s_waitcnt lgkmcnt(8)")
    a(f"v_max_f32 v{T_+6}, v{T_+2}, v{T_+4}")
    a(f"v_sub_f32 v{T_+7}, v{T_+2}, v{T_+6}")
    a(f"v_sub_f32 v{T_+8}, v{T_+4}, v{T_+6}")
    a(f"v_exp_f32 v{T_+7}, v{T_+7}")
    a(f"v_exp_f32 v{T_+8}, v{T_+8}")
    a("s_nop 0")
    a(f"v_mul_f32 v{T_+9}, v{T_+3}, v{T_+7}")
    a(f"v_fma_f32 v{T_+9}, v{T_+5}, v{T_+8}, v{T_+9}")
    a(f"v_rcp_f32 v{T_+9}, v{T_+9}")
    a("s_nop 0")
    a(f"v_mul_f32 v{T_+7}, v{T_+7}, v{T_+9}")
    a(f"v_mul_f32 v{T_+8}, v{T_+8}, v{T_+9}")
    for r in range(32): a(f"v_mul_f32 v{O_+r}, v{O_+r}, v{T_+7}")
    a("s_waitcnt lgkmcnt(0)")
    for r in range(32): a(f"v_fma_f32 v{O_+r}, v{O_+32+r}, v{T_+8}, v{O_+r}")
    for k in range(16): a(f"v_cvt_pk_bf16_f32 v{O_+32+k}, v{O_+2*k}, v{O_+2*k+1}")
    a("s_lshl_b32 s43, s37, 2")
    a("s_add_u32 s43, s43, s26")
    a("s_lshl_b32 s43, s43, 18")
    a("s_lshl_b32 s44, s27, 13")
    a("s_add_u32 s43, s43, s44")
    a("s_lshl_b32 s44, s25, 12")
    a("s_add_u32 s43, s43, s44")
    a(f"s_add_u32 s43, s43, {WS_CTX}")
    for k in range(4):
        a(f"buffer_store_dwordx4 {vr(O_+32+4*k,4)}, v{VD}, s[16:19], s43 offen offset:{1024*k}")
    a("s_cmp_eq_u32 s36, 1")
    a(f"s_cbranch_scc1 {name}_done")
    a("s_mov_b32 s36, 1")
    a("s_mov_b32 s37, s28")
    a("s_mov_b32 s45, 0")
    a("s_nop 1")
    for r in range(64): a(f"v_mov_b32 v{O_+r}, 0")
    a(f"v_mov_b32 v{M_}, 0xf149f2ca")
    for r in range(16): a(f"v_accvgpr_write_b32 a{LA+r}, 0")
    a(f"v_add_f32 v{MX1}, s42, v{M_}")
    a(f"v_cmp_gt_f32 vcc, v{MX}, v{MX1}")
    a("s_cmp_eq_u32 s56, 0")
    a(f"s_cbranch_scc1 {name}_cont0")
    a(f"s_branch {name}_cont1")
    a.label(name + "_done")
    a("s_endpgm")
    return kernel_desc(name, 256, 208)

def build(path):
    import gemm1
    a = Asm()
    a.raw("; @launch kernel=qkv_kernel grid=(256,1,1) block=(512,1,1) lds=163840")
    a.raw("; @launch kernel=attn_kernel grid=(256,1,1) block=(512,1,1) lds=163840")
    a.raw('.amdgcn_target "amdgcn-amd-amdhsa--gfx950"')
    a.raw(".text")
    d1 = gemm1.gen_gemm1(a)
    d2 = gen_attn(a)
    a.raw('.section .rodata,"a"')
    a.raw(d1); a.raw(d2)
    open(path, "w").write(a.text())
if __name__ == "__main__":
    build("g2.s")
    OPT['prio'] = 0
    build("g2_np.s")
```

```python
class Asm:
    def __init__(self):
        self.lines = []
        self.uid = 0
    def __call__(self, s):
        self.lines.append("    " + s)
    def raw(self, s):
        self.lines.append(s)
    def label(self, name):
        self.lines.append(name + ":")
    def newlabel(self, base="L"):
        self.uid += 1
        return f"{base}_{self.uid}"
    def c(self, s):
        self.lines.append("    ; " + s)
    def text(self):
        return "\n".join(self.lines) + "\n"

def vr(lo, n):
    return f"v[{lo}:{lo+n-1}]" if n > 1 else f"v{lo}"
def ar(lo, n):
    return f"a[{lo}:{lo+n-1}]" if n > 1 else f"a{lo}"
def sr(lo, n):
    return f"s[{lo}:{lo+n-1}]" if n > 1 else f"s{lo}"

def srd(a, d, base_lo, nbytes):
    a(f"s_mov_b32 s{d}, s{base_lo}")
    a(f"s_and_b32 s{d+1}, s{base_lo+1}, 0xffff")
    a(f"s_mov_b32 s{d+2}, {nbytes}")
    a(f"s_mov_b32 s{d+3}, 0x00020000")

def kernel_header(a, name):
    a.raw(f".globl {name}")
    a.raw(".p2align 8")
    a.raw(f".type {name},@function")
    a.label(name)

def kernel_desc(name, vgpr, accum, sgpr=102):
    return f""".p2align 6
.amdhsa_kernel {name}
  .amdhsa_next_free_vgpr {vgpr}
  .amdhsa_next_free_sgpr {sgpr}
  .amdhsa_accum_offset {accum}
  .amdhsa_group_segment_fixed_size 0
  .amdhsa_kernarg_size 144
  .amdhsa_user_sgpr_count 2
  .amdhsa_user_sgpr_kernarg_segment_ptr 1
  .amdhsa_system_sgpr_workgroup_id_x 1
  .amdhsa_float_denorm_mode_32 3
.end_amdhsa_kernel
"""
WS_Q   = 0
WS_K   = 16 << 20
WS_VT  = 32 << 20
WS_CTX = 48 << 20
WS_WOT = 64 << 20
WS_BYTES = 268435456
```

```python
from common import *

DMAPOS=[1,3,5,7]
def gen_gemm1(a, name="qkv_kernel"):
    R, P = 8, 6
    ACC = [16, 32]
    FR = 48
    PK = [80, 88]
    kernel_header(a, name)
    a("s_cmp_ge_u32 s2, 256")
    a("s_cbranch_scc1 " + name + "_done")
    a("s_load_dwordx4 s[36:39], s[0:1], 0")
    a("s_load_dwordx4 s[40:43], s[0:1], 16")
    a("s_load_dwordx4 s[60:63], s[0:1], 32")
    a("s_load_dwordx2 s[46:47], s[0:1], 136")
    a("v_and_b32 v1, 63, v0")
    a("v_lshrrev_b32 v9, 6, v0")
    a("s_nop 0")
    a("v_readfirstlane_b32 s24, v9")
    a("s_and_b32 s25, s2, 7")
    a("s_lshl_b32 s25, s25, 2")
    a("s_lshr_b32 s26, s2, 3")
    a("s_and_b32 s26, s26, 3")
    a("s_add_u32 s25, s25, s26")
    a("s_lshr_b32 s26, s2, 5")
    a("s_cmp_lt_u32 s25, 11")
    a("s_cbranch_scc0 " + name + "_kv")
    a("s_mul_i32 s30, s25, 12")
    a("s_sub_i32 s27, s25, 7")
    a("s_max_i32 s27, s27, 0")
    a("s_sub_u32 s30, s30, s27")
    a("s_cmp_lt_u32 s25, 7")
    a("s_cselect_b32 s27, 12, 11")
    a("s_add_u32 s31, s30, s27")
    a("s_waitcnt lgkmcnt(0)")
    srd(a, 8, 36, 2097152)
    srd(a, 12, 40, 4194304)
    srd(a, 20, 40, 4194304)
    a(f"s_mov_b32 s29, {WS_Q}")
    a("s_sub_u32 s57, s25, 7")
    a("s_branch " + name + "_go")
    a.label(name + "_kv")
    a("s_sub_u32 s25, s25, 11")
    a("s_mul_i32 s30, s25, 12")
    a("s_min_u32 s27, s25, 4")
    a("s_add_u32 s30, s30, s27")
    a("s_cmp_lt_u32 s25, 4")
    a("s_cselect_b32 s27, 13, 12")
    a("s_add_u32 s31, s30, s27")
    a("s_waitcnt lgkmcnt(0)")
    srd(a, 8, 38, 2097152)
    srd(a, 12, 42, 4194304)
    srd(a, 20, 60, 4194304)
    a(f"s_mov_b32 s29, {WS_K}")
    a("s_mov_b32 s57, -1")
    a.label(name + "_go")
    srd(a, 16, 46, WS_BYTES)
    a("s_lshl_b32 s32, s26, 8")
    a("s_lshl_b32 s27, s24, 5")
    a("s_add_u32 s32, s32, s27")
    a("v_and_b32 v10, 31, v1")
    a("v_lshrrev_b32 v11, 5, v1")
    a("v_lshrrev_b32 v12, 3, v1")
    a("s_lshl_b32 s27, s24, 5")
    a("v_add_u32 v12, s27, v12")
    a("v_lshlrev_b32 v12, 13, v12")
    a("v_and_b32 v13, 7, v1")
    a("v_bfe_u32 v14, v1, 4, 1")
    a("v_lshlrev_b32 v14, 2, v14")
    a("v_xor_b32 v13, v13, v14")
    a("v_lshl_add_u32 v4, v13, 4, v12")
    a("v_lshrrev_b32 v12, 3, v1")
    a("v_add_u32 v12, s32, v12")
    a("v_lshlrev_b32 v12, 10, v12")
    a("v_and_b32 v13, 7, v1")
    a("v_lshrrev_b32 v14, 4, v1")
    a("v_xor_b32 v13, v13, v14")
    a("v_lshl_add_u32 v7, v13, 4, v12")
    a("v_xor_b32 v15, 64, v7")
    a("v_bfe_u32 v12, v10, 1, 3")
    a("v_xor_b32 v12, v12, v11")
    a("v_lshlrev_b32 v12, 4, v12")
    a("v_lshl_add_u32 v12, v10, 7, v12")
    a("s_mul_i32 s27, s24, 12288")
    a("s_add_u32 s27, s27, 65536")
    a("v_add_u32 v96, s27, v12")
    a("v_xor_b32 v97, 32, v96")
    a("v_xor_b32 v98, 64, v96")
    a("v_xor_b32 v99, 96, v96")
    a("s_mov_b32 s52, s27")
    a("s_lshl_b32 s34, s24, 12")
    a("s_mov_b32 s53, 0")

    def dma_w_setup():
        a("s_lshr_b32 s27, s53, 1")
        a("s_lshl_b32 s27, s27, 1")
        a("s_add_u32 s27, s27, s56")
        a("s_cmp_ge_u32 s27, 128")
        a("s_cselect_b32 s12, s20, s12")
        a("s_cselect_b32 s13, s21, s13")
        a("s_and_b32 s27, s27, 127")
        a("s_lshl_b32 s54, s27, 6")
        a("s_and_b32 s27, s53, 1")
        a("s_lshl_b32 s27, s27, 21")
        a("s_add_u32 s54, s54, s27")
        a("s_and_b32 s27, s53, 3")
        a("s_lshl_b32 s27, s27, 15")
        a("s_add_u32 s55, s27, s34")
        a("s_add_u32 s53, s53, 1")
    def dma_w(q):
        return [f"s_add_u32 m0, s55, {q*1024}",
                f"s_add_u32 s35, s54, {q*65536}",
                "buffer_load_dwordx4 v4, s[12:15], s35 offen lds"]
    a("s_mov_b32 s56, s30")
    for st in range(2):
        dma_w_setup()
        for q in range(4):
            for op in dma_w(q): a(op)
    def dma_x(p):
        reg = p % 3
        for q in range(4):
            a(f"s_add_u32 m0, s52, {reg*4096+q*1024}")
            a(f"s_mov_b32 s35, {q*8192 + p*128}")
            a(f"buffer_load_dwordx4 {'v7' if q%2==0 else 'v15'}, s[8:11], s35 offen lds")
    for p in range(3): dma_x(p)
    a("s_lshl_b32 s27, s32, 8")
    a("v_lshlrev_b32 v5, 4, v1")
    a("v_add_u32 v5, s27, v5")
    a("v_add_u32 v6, 0x1000, v5")
    a("v_lshrrev_b32 v12, 5, v1")
    a("v_lshlrev_b32 v12, 3, v12")
    a("v_bfe_u32 v13, v1, 2, 2")
    a("v_add_u32 v12, v12, v13")
    a("v_lshlrev_b32 v12, 7, v12")
    a("v_bfe_u32 v13, v1, 3, 1")
    a("v_lshl_add_u32 v12, v13, 6, v12")
    a("v_bfe_u32 v13, v1, 4, 1")
    a("v_lshl_add_u32 v12, v13, 5, v12")
    a("v_and_b32 v13, 3, v1")
    a("v_lshl_add_u32 v2, v13, 3, v12")
    a("v_xor_b32 v3, 64, v2")
    a("v_mov_b32 v8, 0")
    a("v_add_u32 v103, 0x400, v5")
    a("s_mov_b32 s33, 0x10000000")
    for p in range(8):
        rem = min(2, 7 - p)
        a(f"s_waitcnt vmcnt({4*rem})")
        for b in range(4):
            a(f"ds_read_b128 {ar(16*p+4*b,4)}, v{96+b} offset:{(p%3)*4096}")
        if p + 3 < 8:
            a("s_waitcnt lgkmcnt(0)")
            dma_x(p + 3)
    a("s_waitcnt vmcnt(0) lgkmcnt(0)")
    a("s_barrier")
    dma_w_setup()
    for q in range(4):
        for op in dma_w(q): a(op)
    a("buffer_store_dwordx4 v[80:83], v8, s[16:19], s33 offen")
    a("buffer_store_dwordx4 v[80:83], v8, s[16:19], s33 offen")

    def epi(acc, pk, voffs, soff):
        ops = []
        for g in range(2):
            for i in range(4):
                ops.append(f"v_cvt_pk_bf16_f32 v{pk+4*g+i}, v{acc+8*g+2*i}, v{acc+8*g+2*i+1}")
            ops.append(f"buffer_store_dwordx4 {vr(pk+4*g,4)}, {voffs[g]}, s[16:19], {soff} offen")
        return ops

    def seq(full):
        s = []
        for stg in range(2):
            for nb in ((0, 1) if full else (0,)):
                for tt in range(16):
                    s.append((stg, nb, stg * 16 + tt))
        return s
    def rd(fr, slotidx, nextchunk=False):
        stg, nb, t = fr
        slot = FR + 4 * (slotidx % R)
        base = ("v2" if nb == 0 else "v3") if not nextchunk else ("v100" if nb == 0 else "v101")
        off = stg * 32768 + (t % 16) * 2048
        a(f"ds_read_b64_tr_b16 {vr(slot,2)}, {base} offset:{off}")
        a(f"ds_read_b64_tr_b16 {vr(slot+2,2)}, {base} offset:{off+512}")

    S = seq(True)
    for f in range(P): rd(S[f], f)
    a.label(name + "_loop")
    a("v_xor_b32 v100, 0x10000, v2")
    a("v_xor_b32 v101, 0x10000, v3")
    a("s_and_b32 s49, s30, 127")
    a("s_lshl_b32 s49, s49, 5")
    a("s_cmp_ge_u32 s30, 128")
    a("s_cbranch_scc1 " + name + "_bodyV")
    a("s_add_u32 s27, s30, 1")
    a("s_cmp_ge_u32 s27, s31")
    a("s_cbranch_scc1 " + name + "_bodyH")

    def body(isV, full, first_barrier_skipped=False):
        for nb, sg in ((0, 50), (1, 51)):
            a(f"s_add_u32 s27, s49, {32*nb}")
            a(f"s_lshr_b32 s{sg}, s27, 7")
            a(f"s_lshl_b32 s{sg}, s{sg}, 19")
            a("s_and_b32 s27, s27, 127")
            a(f"s_lshl_b32 s27, s27, {5 if isV else 6}")
            a(f"s_add_u32 s{sg}, s{sg}, s27")
            a(f"s_add_u32 s{sg}, s{sg}, {WS_VT if isV else 's29'}")
        voff = ("v5", "v6") if isV else ("v5", "v103")
        S = seq(full)
        n = len(S)
        half = n // 2
        extra = {}
        def put(pos, ops):
            for i, op in enumerate(ops): extra.setdefault(pos + i // 2, []).append(op)
        for stg in range(2):
            st0 = stg * half
            for q in range(4):
                extra.setdefault(st0 + DMAPOS[q], []).extend(dma_w(q))
        put(8, epi(ACC[1], PK[1], ("v5", "v8"), "s33"))
        if full:
            put(48 + 5, epi(ACC[0], PK[0], voff, "s50"))
        for f in range(n):
            stg, nb, t = S[f]
            if f % half == 0:
                a("s_waitcnt vmcnt(8)")
                a("s_barrier")
                dma_w_setup()
            if f + P < n: rd(S[f + P], f + P)
            elif full: rd(S[f + P - n], f + P, nextchunk=True)
            rem = P if full else min(P, n - 1 - f)
            a(f"s_waitcnt lgkmcnt({2*rem})")
            slot = FR + 4 * (f % R)
            acc = vr(ACC[nb], 16)
            cin = "0" if t == 0 else acc
            if isV:
                a(f"v_mfma_f32_32x32x16_bf16 {acc}, {ar(4*t,4)}, {vr(slot,4)}, {cin}")
            else:
                a(f"v_mfma_f32_32x32x16_bf16 {acc}, {vr(slot,4)}, {ar(4*t,4)}, {cin}")
            for op in extra.get(f, []): a(op)
        if full:
            a(f"v_mov_b32 v8, {voff[1]}")
            a("s_mov_b32 s33, s51")
            a("s_branch " + name + "_next")
        else:
            a("s_nop 15")
            for op in epi(ACC[0], PK[0], voff, "s50"): a(op)
            a("s_cmp_ge_i32 s57, 0")
            a("s_cbranch_scc1 " + name + "_wot")
            a("s_branch " + name + "_done")
    body(False, True)
    a.label(name + "_bodyH")
    body(False, False)
    a.label(name + "_bodyV")
    body(True, True)
    a.label(name + "_next")
    a("v_mov_b32 v2, v100")
    a("v_mov_b32 v3, v101")
    a("s_add_u32 s30, s30, 2")
    a("s_cmp_lt_u32 s30, s31")
    a("s_cbranch_scc1 " + name + "_loop")
    a("s_nop 15")
    for op in epi(ACC[1], PK[1], ("v5", "v8"), "s33"): a(op)
    a("s_branch " + name + "_done")
    a.label(name + "_wot")
    srd(a, 12, 62, 4194304)
    a("s_lshl_b32 s57, s57, 3")
    a("s_add_u32 s57, s57, s26")
    a("s_lshl_b32 s57, s57, 3")
    a("s_add_u32 s57, s57, s24")
    a("s_waitcnt vmcnt(0) lgkmcnt(0)")
    a("s_barrier")
    a("v_lshlrev_b32 v4, 4, v1")
    a("s_lshl_b32 s54, s57, 14")
    a("s_lshl_b32 s55, s24, 14")
    for r in range(16):
        a(f"s_add_u32 m0, s55, {r*1024}")
        a(f"s_add_u32 s35, s54, {r*1024}")
        a("buffer_load_dwordx4 v4, s[12:15], s35 offen lds")
    a("v_lshrrev_b32 v12, 5, v1")
    a("v_lshlrev_b32 v12, 2, v12")
    a("v_bfe_u32 v13, v1, 2, 2")
    a("v_add_u32 v12, v12, v13")
    a("v_lshlrev_b32 v12, 10, v12")
    a("v_bfe_u32 v13, v1, 4, 1")
    a("v_lshl_add_u32 v12, v13, 5, v12")
    a("v_and_b32 v13, 3, v1")
    a("v_lshl_add_u32 v12, v13, 3, v12")
    a("v_add_u32 v12, s55, v12")
    a("s_lshl_b32 s54, s57, 10")
    a(f"s_add_u32 s54, s54, {WS_WOT}")
    a("s_waitcnt vmcnt(0)")
    for mb in range(16):
        a(f"ds_read_b64_tr_b16 {vr(16+4*mb,2)}, v12 offset:{mb*64}")
        a(f"ds_read_b64_tr_b16 {vr(18+4*mb,2)}, v12 offset:{mb*64+8192}")
        if mb % 4 == 3:
            a("s_waitcnt lgkmcnt(0)")
            for m2 in range(mb - 3, mb + 1):
                a(f"s_add_u32 s35, s54, {m2*262144}")
                a(f"buffer_store_dwordx4 {vr(16+4*m2,4)}, v4, s[16:19], s35 offen")
    a.label(name + "_done")
    a("s_endpgm")
    return kernel_desc(name, 256, 128)

if __name__ == "__main__":
    a = Asm()
    a.raw("; @launch kernel=qkv_kernel grid=(256,1,1) block=(512,1,1) lds=163840")
    a.raw('.amdgcn_target "amdgcn-amd-amdhsa--gfx950"')
    a.raw(".text")
    d = gen_gemm1(a)
    a.raw('.section .rodata,"a"')
    a.raw(d)
    open("g1.s", "w").write(a.text())
```

```python
from common import *

def gen_oproj_body(a, name):
    D = 8
    ACC = 16
    FR = 80
    a("s_setprio 1")
    a("s_load_dwordx2 s[46:47], s[0:1], 136")
    a("s_load_dwordx2 s[44:45], s[0:1], 120")
    a("v_and_b32 v1, 63, v0")
    a("v_lshrrev_b32 v2, 6, v0")
    a("s_nop 0")
    a("v_readfirstlane_b32 s24, v2")
    a("s_and_b32 s25, s2, 7")
    a("s_lshr_b32 s26, s2, 3")
    a("s_lshl_b32 s25, s25, 2")
    a("s_lshr_b32 s27, s26, 3")
    a("s_add_u32 s25, s25, s27")
    a("s_and_b32 s26, s26, 7")
    a("v_lshlrev_b32 v3, 4, v1")
    a("s_lshl_b32 s27, s24, 16")
    a("s_lshl_b32 s30, s25, 19")
    a("s_add_u32 s30, s30, s27")
    a(f"s_add_u32 s30, s30, {WS_CTX}")
    a("s_add_u32 s31, s30, 262144")
    a("s_lshl_b32 s32, s26, 19")
    a("s_add_u32 s32, s32, s27")
    a(f"s_add_u32 s32, s32, {WS_WOT}")
    a("s_add_u32 s33, s32, 262144")
    a("s_waitcnt lgkmcnt(0)")
    srd(a, 16, 46, WS_BYTES)
    srd(a, 20, 44, 4194304)
    def loads(slot, sub):
        for i, sg in enumerate((32, 33, 30, 31)):
            a(f"buffer_load_dwordx4 {vr(FR+16*slot+4*i,4)}, v3, s[16:19], s{sg} offen offset:{1024*sub}")
    def adv():
        for sg in (30, 31, 32, 33): a(f"s_add_u32 s{sg}, s{sg}, 4096")
    for st in range(D):
        loads(st, st % 4)
        if st % 4 == 3: adv()
    for r in range(64): a(f"v_mov_b32 v{ACC+r}, 0")
    a("s_mov_b32 s34, 0")
    a.label(name + "_loop")
    for st in range(D):
        a(f"s_waitcnt vmcnt({4*(D-1)})")
        f = FR + 16 * st
        for mi in range(2):
            for qi in range(2):
                acc = vr(ACC + 16 * (2 * mi + qi), 16)
                a(f"v_mfma_f32_32x32x16_bf16 {acc}, {vr(f+4*mi,4)}, {vr(f+8+4*qi,4)}, {acc}")
        loads(st, st % 4)
        if st % 4 == 3: adv()
    a("s_add_u32 s34, s34, 1")
    a(f"s_cmp_lt_u32 s34, {64//D}")
    a(f"s_cbranch_scc1 {name}_loop")
    a("s_nop 15")
    a("s_lshl_b32 s27, s24, 14")
    a("v_add_u32 v4, s27, v3")
    for k in range(16): a(f"ds_write_b128 v4, {vr(ACC+4*k,4)} offset:{1024*k}")
    a("s_waitcnt lgkmcnt(0)")
    a("s_barrier")
    a("v_and_b32 v5, 7, v0")
    a("v_lshrrev_b32 v6, 3, v0")
    a("v_lshrrev_b32 v7, 2, v5")
    a("v_and_b32 v8, 3, v5")
    a("v_lshlrev_b32 v7, 13, v7")
    a("v_lshl_add_u32 v7, v8, 10, v7")
    a("v_lshl_add_u32 v7, v6, 4, v7")
    a("s_lshl_b32 s27, s25, 6")
    a("v_add_u32 v9, s27, v6")
    a("v_lshlrev_b32 v9, 11, v9")
    a("v_lshl_add_u32 v9, v5, 4, v9")
    a("s_lshl_b32 s27, s26, 7")
    a("s_waitcnt vmcnt(0)")
    for it in range(2):
        base = 80 + 32 * it
        for w in range(4):
            for hh in range(2):
                a(f"ds_read_b128 {vr(base+8*w+4*hh,4)}, v7 offset:{w*16384+it*4096+hh*512}")
    for it in range(2):
        base = 80 + 32 * it
        a(f"s_waitcnt lgkmcnt({8*(1-it)})")
        for e in range(8):
            a(f"v_add_f32 v{base+e}, v{base+e}, v{base+8+e}")
            a(f"v_add_f32 v{base+16+e}, v{base+16+e}, v{base+24+e}")
        for e in range(8):
            a(f"v_add_f32 v{base+e}, v{base+e}, v{base+16+e}")
        for e in range(4):
            a(f"v_cvt_pk_bf16_f32 v{base+8+e}, v{base+2*e}, v{base+2*e+1}")
        a(f"s_add_u32 s28, s27, {it*65536}")
        a(f"buffer_store_dwordx4 {vr(base+8,4)}, v9, s[20:23], s28 offen")

def gen_oproj(a, name="oproj_kernel"):
    kernel_header(a, name)
    a("s_cmp_ge_u32 s2, 256")
    a("s_cbranch_scc1 " + name + "_done")
    gen_oproj_body(a, name)
    a.label(name + "_done")
    a("s_endpgm")
    return kernel_desc(name, 208, 208)

def build(path):
    import gemm1, attn
    a = Asm()
    a.raw("; @launch kernel=qkv_kernel grid=(256,1,1) block=(512,1,1) lds=163840")
    a.raw("; @launch kernel=attn_kernel grid=(256,1,1) block=(512,1,1) lds=163840")
    a.raw("; @launch kernel=oproj_kernel grid=(256,1,1) block=(256,1,1) lds=65536")
    a.raw('.amdgcn_target "amdgcn-amd-amdhsa--gfx950"')
    a.raw(".text")
    d1 = gemm1.gen_gemm1(a)
    d2 = attn.gen_attn(a)
    d3 = gen_oproj(a)
    a.raw('.section .rodata,"a"')
    a.raw(d1); a.raw(d2); a.raw(d3)
    open(path, "w").write(a.text())
if __name__ == "__main__":
    build("g3.s")
```

```python
from common import *

DB = 36864
UOFF = 18432
UP = 4416
ROWP = 144

def gen_ssm_body(a, name, wg_sgpr="s3"):
    L = lambda s: f"{name}_{s}"
    a("s_load_dwordx4 s[36:39], s[0:1], 48")
    a("s_load_dwordx4 s[40:43], s[0:1], 64")
    a("s_load_dwordx4 s[44:47], s[0:1], 80")
    a("s_load_dwordx4 s[48:51], s[0:1], 96")
    a("s_load_dwordx4 s[52:55], s[0:1], 112")
    a("v_and_b32 v1, 63, v0")
    a("v_lshrrev_b32 v2, 6, v0")
    a("s_nop 0")
    a("v_readfirstlane_b32 s24, v2")
    a("s_lshr_b32 s25, s24, 1")
    a("s_and_b32 s26, s24, 1")
    a(f"s_lshl_b32 s27, {wg_sgpr}, 1")
    a("s_add_u32 s28, s27, s25")
    a(f"s_mul_i32 s29, s25, {DB}")
    a("v_and_b32 v10, 31, v1")
    a("v_lshrrev_b32 v11, 5, v1")
    a("s_waitcnt lgkmcnt(0)")
    srd(a, 8, 36, 2097152)
    srd(a, 12, 38, 131072)
    srd(a, 16, 40, 131072)
    srd(a, 20, 42, 131072)
    srd(a, 56, 44, 131072)
    srd(a, 60, 46, 131072)
    srd(a, 64, 48, 131072)
    srd(a, 68, 50, 1024)
    srd(a, 72, 52, 1024)
    srd(a, 76, 54, 4194304)
    PS = (12, 16, 20, 56, 60, 64)
    a("v_lshlrev_b32 v3, 10, v0")
    a("s_lshl_b32 s30, s27, 1")
    for i in range(8):
        a(f"s_add_u32 s31, s30, {i*262144}")
        a(f"buffer_load_dword v{240+i}, v3, s[8:11], s31 offen")
    a("v_mov_b32 v4, 0")
    a("s_lshl_b32 s31, s28, 1")
    a("buffer_load_ushort v5, v4, s[68:71], s31 offen")
    a("buffer_load_dword v248, v4, s[72:75], s30 offen")
    PR = 128
    a("v_lshlrev_b32 v6, 4, v11")
    a("s_lshl_b32 s31, s28, 8")
    a("s_lshl_b32 s32, s26, 7")
    a("s_add_u32 s31, s31, s32")
    for ks in range(4):
        for p in range(6):
            a(f"buffer_load_dwordx4 {vr(PR+(ks*6+p)*4,4)}, v6, s[{PS[p]}:{PS[p]+3}], s31 offen offset:{32*ks}")
    a("v_lshlrev_b32 v7, 1, v1")
    for p in range(6):
        a(f"buffer_load_ushort v{232+p}, v7, s[{PS[p]}:{PS[p]+3}], s31 offen")
    for r in range(4): a(f"v_mov_b32 v{12+r}, 0")
    a("v_lshlrev_b32 v8, 4, v0")
    a(f"v_add_u32 v9, {DB}, v8")
    for i in range(9):
        a(f"ds_write_b128 v8, v[12:15] offset:{4096*i}")
        a(f"ds_write_b128 v9, v[12:15] offset:{4096*i}")
    a("s_waitcnt lgkmcnt(0)")
    a("s_barrier")
    a("v_lshlrev_b32 v8, 1, v0")
    a(f"v_add_u32 v9, {DB}, v8")
    a("s_waitcnt vmcnt(32)")
    for i in range(8):
        for phi in range(4):
            off = UOFF + phi * UP + (256 * i + 64 - phi) * 2
            a(f"ds_write_b16 v8, v{240+i} offset:{off}")
            a(f"ds_write_b16_d16_hi v9, v{240+i} offset:{off}")
    a("s_mov_b32 s33, 0x3FB8AA3B")
    a("s_mov_b32 s34, 0x3E22F983")
    a("s_waitcnt vmcnt(30)")
    a("v_lshlrev_b32 v5, 16, v5")
    a("v_mul_f32 v5, s33, v5")
    a("v_exp_f32 v5, v5")
    a("s_nop 0")
    a("v_cvt_pk_bf16_f32 v5, 0, v5")
    a("v_cvt_f32_u32 v16, v10")
    a("v_mul_f32 v17, 32.0, v16") if False else a("v_lshlrev_b32 v17, 5, v10")
    a("v_cvt_f32_u32 v17, v17")
    a("v_add_f32 v18, 0x44800000, v17")
    ACC = 32
    for r in range(32): a(f"v_mov_b32 v{ACC+r}, 0")

    def unpack(dst, src, j):
        if j % 2 == 0: a(f"v_lshlrev_b32 v{dst}, 16, v{src + j//2}")
        else: a(f"v_and_b32 v{dst}, 0xffff0000, v{src + j//2}")
    def cexp(re, im, zr, zi, T, tmp):
        a(f"v_mul_f32 v{tmp}, v{zr}, v{T}")
        a(f"v_mul_f32 v{im}, v{zi}, v{T}")
        a(f"v_exp_f32 v{tmp}, v{tmp}")
        a(f"v_fract_f32 v{im}, v{im}")
        a(f"v_cos_f32 v{re}, v{im}")
        a(f"v_sin_f32 v{im}, v{im}")
        a("s_nop 0")
        a(f"v_mul_f32 v{re}, v{re}, v{tmp}")
        a(f"v_mul_f32 v{im}, v{im}, v{tmp}")
    def split(hi, lo, x0, x1, t0, t1):
        a(f"v_cvt_pk_bf16_f32 v{hi}, v{x0}, v{x1}")
        a(f"v_lshlrev_b32 v{t0}, 16, v{hi}")
        a(f"v_and_b32 v{t1}, 0xffff0000, v{hi}")
        a(f"v_sub_f32 v{t0}, v{x0}, v{t0}")
        a(f"v_sub_f32 v{t1}, v{x1}, v{t1}")
        a(f"v_cvt_pk_bf16_f32 v{lo}, v{t0}, v{t1}")
    AF = lambda rt, c, h: 64 + ((rt * 2 + c) * 2 + h) * 4
    BF = lambda c, h: 96 + (c * 2 + h) * 4
    for ks in range(4):
        a(f"s_waitcnt vmcnt({6 + 6*(3-ks)})")
        base = PR + ks * 24
        for jp in range(4):
            vals = {}
            for jj in range(2):
                j = 2 * jp + jj
                zr, zi, wr, wi = 112 + 4 * jj, 113 + 4 * jj, 114 + 4 * jj, 115 + 4 * jj
                unpack(19, base + 0, j); unpack(20, base + 4, j)
                unpack(21, base + 8, j); unpack(22, base + 12, j)
                unpack(23, base + 16, j); unpack(24, base + 20, j)
                a(f"v_mul_f32 v{zr}, v5, v19")
                a(f"v_mul_f32 v{zi}, v5, v20")
                a("v_mul_f32 v21, v5, v21")
                a("v_mul_f32 v22, v5, v22")
                a(f"v_mul_f32 v{zr}, s33, v{zr}")
                a(f"v_mul_f32 v{zi}, s34, v{zi}")
                a(f"v_mul_f32 v{wr}, v23, v21")
                a(f"v_fma_f32 v{wr}, -v24, v22, v{wr}")
                a(f"v_mul_f32 v{wi}, v23, v22")
                a(f"v_fma_f32 v{wi}, v24, v21, v{wi}")
            for rt in range(2):
                T = 17 + rt
                cexp(120, 121, 112, 113, T, 25)
                cexp(122, 123, 116, 117, T, 26)
                split(AF(rt, 0, 0) + jp, AF(rt, 0, 1) + jp, 120, 122, 25, 26)
                split(AF(rt, 1, 0) + jp, AF(rt, 1, 1) + jp, 121, 123, 25, 26)
            cexp(120, 121, 112, 113, 16, 25)
            cexp(122, 123, 116, 117, 16, 26)
            for (er, ei, wr, wi, br, bi) in ((120, 121, 114, 115, 124, 125), (122, 123, 118, 119, 126, 127)):
                a(f"v_mul_f32 v{br}, v{wr}, v{er}")
                a(f"v_fma_f32 v{br}, -v{wi}, v{ei}, v{br}")
                a(f"v_mul_f32 v{bi}, v{wr}, v{ei}")
                a(f"v_fma_f32 v{bi}, v{wi}, v{er}, v{bi}")
                a(f"v_sub_f32 v{bi}, 0, v{bi}")
            split(BF(0, 0) + jp, BF(0, 1) + jp, 124, 126, 25, 26)
            split(BF(1, 0) + jp, BF(1, 1) + jp, 125, 127, 25, 26)
        a("s_nop 1")
        for rt in range(2):
            acc = vr(ACC + 16 * rt, 16)
            for c in range(2):
                for (ha, hb) in ((1, 0), (0, 1), (0, 0)):
                    a(f"v_mfma_f32_32x32x16_bf16 {acc}, {vr(AF(rt,c,ha),4)}, {vr(BF(c,hb),4)}, {acc}")
    a("s_waitcnt vmcnt(0)")
    for p in range(6): a(f"v_lshlrev_b32 v{232+p}, 16, v{232+p}")
    a("v_mul_f32 v112, v5, v232")
    a("v_mul_f32 v113, v5, v233")
    a("v_mul_f32 v234, v5, v234")
    a("v_mul_f32 v235, v5, v235")
    a("v_mul_f32 v112, s33, v112")
    a("v_mul_f32 v113, s34, v113")
    a("v_mul_f32 v114, v236, v234")
    a("v_fma_f32 v114, -v237, v235, v114")
    a("v_mul_f32 v115, v236, v235")
    a("v_fma_f32 v115, v237, v234, v115")
    a("v_mov_b32 v19, 0x45000000")
    cexp(120, 121, 112, 113, 19, 25)
    a("v_mul_f32 v122, v114, v120")
    a("v_fma_f32 v122, -v115, v121, v122")
    a("s_lshl_b32 s31, s26, 2")
    a("s_add_u32 s31, s31, s29")
    a("s_add_u32 s31, s31, 8196")
    a("v_mov_b32 v8, s31")
    a("ds_add_f32 v8, v122")
    a("v_lshlrev_b32 v8, 9, v11")
    a("v_lshl_add_u32 v8, v10, 2, v8")
    a("v_add_u32 v8, s29, v8")
    a("s_nop 7")
    for rt in range(2):
        for r in range(16):
            i = (r & 3) + 8 * (r >> 2) + 32 * rt
            a(f"ds_add_f32 v8, v{ACC+16*rt+r} offset:{i*128}")
    a("s_waitcnt lgkmcnt(0)")
    a("s_barrier")
    a("v_mov_b32 v8, s29")
    a("ds_read_b64 v[12:13], v8 offset:8196") if False else None
    a("ds_read_b32 v12, v8 offset:8196")
    a("ds_read_b32 v13, v8 offset:8200")
    a("s_waitcnt lgkmcnt(0)")
    a("v_add_f32 v12, v12, v13")
    a("ds_write_b32 v8, v12 offset:8192")
    a("s_waitcnt lgkmcnt(0)")
    a("s_barrier")
    a("s_lshl_b32 s31, s26, 6")
    a("v_add_u32 v8, s31, v1")
    a("v_lshlrev_b32 v9, 4, v8")
    for e in range(16):
        a(f"v_add_u32 v{64+e}, {e}, v9")
        a(f"v_cvt_f32_u32 v{64+e}, v{64+e}")
        a(f"v_cvt_pk_bf16_f32 v{64+e}, 0, v{64+e}")
        a(f"v_cvt_u32_f32 v{64+e}, v{64+e}")
        a(f"v_lshl_add_u32 v{64+e}, v{64+e}, 2, s29")
        a(f"ds_read_b32 v{64+e}, v{64+e}")
        if e % 8 == 7: a("s_waitcnt lgkmcnt(0)")
    for G in range(2):
        for q in range(4):
            e1, e0 = 64 + 8 * G + 7 - 2 * q, 64 + 8 * G + 6 - 2 * q
            split(96 + 8 * G + q, 100 + 8 * G + q, e1, e0, 25, 26)
    a("v_lshrrev_b32 v9, 1, v8")
    a("v_add_u32 v9, 63, v9")
    a(f"v_mul_u32_u24 v9, {ROWP}, v9")
    a("v_and_b32 v12, 1, v8")
    a("v_lshl_add_u32 v9, v12, 5, v9")
    a("v_add_u32 v9, s29, v9")
    a("s_barrier")
    for G in range(2):
        a(f"ds_write_b128 v9, {vr(96+8*G,4)} offset:{16*G}")
        a(f"ds_write_b128 v9, {vr(100+8*G,4)} offset:{16*G+64}")
    for r in range(4): a(f"v_mov_b32 v{12+r}, 0")
    a("v_lshlrev_b32 v8, 4, v8")
    a("v_add_u32 v8, s29, v8")
    for i in range(4): a(f"ds_write_b128 v8, v[12:15] offset:{2048*i}")
    a("v_cmp_gt_u32 vcc, 55, v1")
    a("s_cmp_eq_u32 s26, 0")
    a("s_cselect_b64 s[80:81], vcc, 0")
    a("s_and_saveexec_b64 s[82:83], s[80:81]")
    a(f"s_cbranch_execz {L('z1')}")
    a("ds_write_b128 v8, v[12:15] offset:8192")
    a.label(L('z1'))
    a("s_mov_b64 exec, s[82:83]")
    a("s_waitcnt lgkmcnt(0)")
    a("s_barrier")
    a("v_add_u32 v8, 57, v10")
    a("v_and_b32 v9, 3, v8")
    a("v_lshrrev_b32 v8, 2, v8")
    a("v_lshlrev_b32 v12, 1, v11")
    a("v_sub_u32 v8, v8, v12")
    a("v_lshlrev_b32 v8, 3, v8")
    a(f"v_mul_u32_u24 v9, {UP}, v9")
    a("v_add_u32 v8, v8, v9")
    a(f"s_add_u32 s31, s29, {UOFF-32}")
    a("v_add_u32 v8, s31, v8")
    a(f"v_mul_u32_u24 v9, {ROWP}, v10")
    a("v_lshl_add_u32 v9, v11, 4, v9")
    a(f"s_add_u32 s31, s29, {63*ROWP}")
    a("v_add_u32 v9, s31, v9")
    for r in range(32): a(f"v_mov_b32 v{ACC+r}, 0")
    def conv_loop(tag, nts, count):
        a(f"s_mov_b32 s35, {count}")
        a.label(L(tag))
        for s in range(2):
            a(f"ds_read_b64 {vr(64+4*s,2)}, v8 offset:{32-32*s}")
            a(f"ds_read_b64 {vr(66+4*s,2)}, v8 offset:{40-32*s}")
            for k, nt in enumerate(nts):
                for h in range(2):
                    a(f"ds_read_b128 {vr(72+16*s+8*k+4*h,4)}, v9 offset:{nt*32*ROWP+32*s+64*h}")
        n1 = 2 + 2 * len(nts)
        for s in range(2):
            a(f"s_waitcnt lgkmcnt({n1*(1-s)})")
            for k, nt in enumerate(nts):
                acc = vr(ACC + 16 * nt, 16)
                for h in range(2):
                    a(f"v_mfma_f32_32x32x16_bf16 {acc}, {vr(64+4*s,4)}, {vr(72+16*s+8*k+4*h,4)}, {acc}")
        a("v_add_u32 v8, 64, v8")
        a(f"v_subrev_u32 v9, {ROWP}, v9")
        a("s_sub_u32 s35, s35, 1")
        a("s_cmp_lg_u32 s35, 0")
        a(f"s_cbranch_scc1 {L(tag)}")
    a("s_cmp_eq_u32 s26, 0")
    a(f"s_cbranch_scc0 {L('w1')}")
    conv_loop('c0a', (0, 1), 16)
    conv_loop('c0b', (0,), 16)
    a(f"s_branch {L('cd')}")
    a.label(L('w1'))
    a("v_add_u32 v8, 1024, v8")
    a(f"v_subrev_u32 v9, {16*ROWP}, v9")
    conv_loop('c1', (1,), 48)
    a.label(L('cd'))
    a("s_nop 15")
    a("s_barrier")
    a("v_lshlrev_b32 v8, 4, v1")
    a("v_add_u32 v8, s29, v8")
    a("s_cmp_eq_u32 s26, 0")
    a(f"s_cbranch_scc0 {L('x1')}")
    for k in range(4): a(f"ds_write_b128 v8, {vr(ACC+16+4*k,4)} offset:{1024*k}")
    a.label(L('x1'))
    a("s_waitcnt lgkmcnt(0)")
    a("s_barrier")
    a("s_cmp_eq_u32 s26, 0")
    a(f"s_cbranch_scc1 {L('x2')}")
    for k in range(4): a(f"ds_read_b128 {vr(64+4*k,4)}, v8 offset:{1024*k}")
    a("s_waitcnt lgkmcnt(0)")
    for r in range(16): a(f"v_add_f32 v{ACC+r}, v{ACC+16+r}, v{64+r}")
    a.label(L('x2'))
    a("s_lshl_b32 s31, s26, 11")
    a("s_add_u32 s31, s31, s29")
    a("s_add_u32 s31, s31, 8192")
    a("v_lshlrev_b32 v8, 6, v10")
    a("v_lshl_add_u32 v8, v11, 3, v8")
    a("v_add_u32 v8, s31, v8")
    for k in range(4):
        a(f"v_cvt_pk_bf16_f32 v{64+2*k}, v{ACC+4*k}, v{ACC+4*k+1}")
        a(f"v_cvt_pk_bf16_f32 v{65+2*k}, v{ACC+4*k+2}, v{ACC+4*k+3}")
        a(f"ds_write_b64 v8, {vr(64+2*k,2)} offset:{16*k}")
    a("s_waitcnt lgkmcnt(0)")
    a("s_barrier")
    a("v_lshlrev_b32 v8, 1, v0")
    for i in range(8):
        a(f"ds_read_u16_d16 v{64+i}, v8 offset:{8192+512*i}")
        a(f"ds_read_u16_d16 v{72+i}, v8 offset:{8192+512*i+DB}")
    a("v_lshlrev_b32 v12, 16, v248")
    a("v_and_b32 v13, 0xffff0000, v248")
    a("v_lshlrev_b32 v3, 11, v0")
    a("s_add_u32 s30, s30, 1024")
    a("s_waitcnt lgkmcnt(0)")
    for i in range(8):
        a(f"v_lshlrev_b32 v14, 16, v{240+i}")
        a(f"v_and_b32 v15, 0xffff0000, v{240+i}")
        a("v_mul_f32 v14, v14, v12")
        a("v_mul_f32 v15, v15, v13")
        a("v_cvt_pk_bf16_f32 v14, 0, v14")
        a("v_cvt_pk_bf16_f32 v15, 0, v15")
        a(f"v_lshlrev_b32 v{64+i}, 16, v{64+i}")
        a(f"v_lshlrev_b32 v{72+i}, 16, v{72+i}")
        a(f"v_add_f32 v14, v14, v{64+i}")
        a(f"v_add_f32 v15, v15, v{72+i}")
        a(f"v_cvt_pk_bf16_f32 v{64+i}, v14, v15")
        a(f"s_add_u32 s31, s30, {i*524288}")
        a(f"buffer_store_dword v{64+i}, v3, s[76:79], s31 offen")

def gen_tail(a, name="tail_kernel"):
    import oproj
    kernel_header(a, name)
    a("s_cmp_ge_u32 s2, 512")
    a("s_cbranch_scc1 " + name + "_done")
    a("s_cmp_ge_u32 s2, 256")
    a("s_cbranch_scc1 " + name + "_ssm")
    oproj.gen_oproj_body(a, name + "_op")
    a("s_branch " + name + "_done")
    a.label(name + "_ssm")
    a("s_sub_u32 s3, s2, 256")
    gen_ssm_body(a, name + "_b")
    a.label(name + "_done")
    a("s_endpgm")
    return kernel_desc(name, 256, 256)

def build(path):
    import gemm1, attn
    a = Asm()
    a.raw("; @launch kernel=qkv_kernel grid=(256,1,1) block=(512,1,1) lds=163840")
    a.raw("; @launch kernel=attn_kernel grid=(256,1,1) block=(512,1,1) lds=163840")
    a.raw("; @launch kernel=tail_kernel grid=(512,1,1) block=(256,1,1) lds=73728")
    a.raw('.amdgcn_target "amdgcn-amd-amdhsa--gfx950"')
    a.raw(".text")
    d1 = gemm1.gen_gemm1(a)
    d2 = attn.gen_attn(a)
    d3 = gen_tail(a)
    a.raw('.section .rodata,"a"')
    a.raw(d1); a.raw(d2); a.raw(d3)
    open(path, "w").write(a.text())
if __name__ == "__main__":
    build("g4.s")
```

```python
import sys
sys.path.insert(0, "gen")
from common import *
import gemm1, attn, ssm
HEADER = open("concat_heads__compressed_kv_cla__ssm_conv_s4__prompt.s.ref").read().split("; Override launch geometry")[0]
def build(path):
    a = Asm()
    a.raw(HEADER.rstrip("\n"))
    a.raw("; @launch kernel=qkv_kernel grid=(256,1,1) block=(512,1,1) lds=163840")
    a.raw("; @launch kernel=attn_kernel grid=(256,1,1) block=(512,1,1) lds=163840")
    a.raw(ssm.TAIL_LAUNCH)
    a.raw('.amdgcn_target "amdgcn-amd-amdhsa--gfx950"')
    a.raw(".text")
    d1 = gemm1.gen_gemm1(a)
    d2 = attn.gen_attn(a)
    d3 = ssm.gen_tail(a)
    a.raw('.section .rodata,"a"')
    a.raw(d1); a.raw(d2); a.raw(d3)
    open(path, "w").write(a.text())
if __name__ == "__main__":
    build(sys.argv[1] if len(sys.argv) > 1 else "concat_heads__compressed_kv_cla__ssm_conv_s4__prompt.s")
```

```python
from common import *

O_ = 16
S_ = [80, 112]
P_ = 144
KF = 160
VF = 184
KA = 13
VD = 12
M_ = 2
ONES = 4
MX = 3
MX1 = 8
LA = 32
T_ = 144
NEG_INF = 0xff800000
SPARE = 131072
OPT = dict(prio=1, thr=0x42800000, barx=12)
RING = 6

def gen_attn(a, name="attn_kernel"):
    kernel_header(a, name)
    a("s_cmp_ge_u32 s2, 256")
    a("s_cbranch_scc1 " + name + "_done")
    a("s_load_dwordx2 s[46:47], s[0:1], 136")
    a("v_and_b32 v1, 63, v0")
    a("v_lshrrev_b32 v14, 6, v0")
    a("s_nop 0")
    a("v_readfirstlane_b32 s24, v14")
    a("s_lshr_b32 s25, s24, 2")
    a("s_and_b32 s26, s24, 3")
    a("s_and_b32 s27, s2, 7")
    a("s_lshl_b32 s27, s27, 2")
    a("s_lshr_b32 s28, s2, 3")
    a("s_and_b32 s28, s28, 3")
    a("s_add_u32 s27, s27, s28")
    a("s_lshr_b32 s28, s2, 5")
    a("s_lshl_b32 s29, s27, 19")
    a("s_lshl_b32 s30, s25, 16")
    a(f"v_lshlrev_b32 v{VD}, 4, v1")
    a(f"v_add_u32 v{KA}, s30, v{VD}")
    a("s_lshl_b32 s32, s25, 14")
    a("s_lshl_b32 s33, s26, 12")
    a("s_add_u32 s32, s32, s33")
    a("s_add_u32 s32, s32, s29")
    a(f"s_add_u32 s33, s32, {WS_VT}")
    a(f"s_add_u32 s32, s32, {WS_K}")
    a("s_lshl_b32 s34, s26, 12")
    a("s_add_u32 s34, s34, s30")
    a("s_add_u32 s35, s34, 32768")
    a("s_sub_u32 s37, 15, s28")
    a("s_add_u32 s58, s37, 1")
    a("s_waitcnt lgkmcnt(0)")
    srd(a, 16, 46, WS_BYTES)

    def dma(kind, soff, buf):
        base = "s34" if kind == "k" else "s35"
        return [[f"s_add_u32 m0, {base}, {buf*16384}", "s_nop 0",
                 f"buffer_load_dwordx4 v{VD}, s[16:19], {soff} offen lds"]] + [
                [f"buffer_load_dwordx4 v{VD}, s[16:19], {soff} offen offset:{q*1024} lds"] for q in range(1, 4)]
    def emit_dma(kind, soff, buf):
        for g in dma(kind, soff, buf):
            for op in g: a(op)

    emit_dma("k", "s32", 0)
    a("s_lshl_b32 s39, s37, 2")
    a("s_add_u32 s39, s39, s26")
    a("s_lshl_b32 s39, s39, 13")
    a("s_add_u32 s39, s39, s29")
    a(f"s_add_u32 s39, s39, {WS_Q}")
    for t in range(4):
        a(f"buffer_load_dwordx4 {ar(4*t,4)}, v{VD}, s[16:19], s39 offen offset:{1024*t}")
    a("s_add_u32 s39, s39, 4096")
    for t in range(4, 8):
        a(f"buffer_load_dwordx4 {ar(4*t,4)}, v{VD}, s[16:19], s39 offen offset:{1024*(t-4)}")
    a("s_add_u32 s38, s32, 32768")
    emit_dma("k", "s38", 1)
    emit_dma("v", "s33", 0)
    if OPT['prio']:
        a("s_cmp_eq_u32 s25, 0")
        a(f"s_cbranch_scc1 {name}_np")
        a("s_setprio 1")
        a.label(name + "_np")
    a("v_and_b32 v10, 31, v1")
    a("v_lshrrev_b32 v11, 5, v1")
    a("s_mov_b32 s41, 0x3E0293EE")
    a(f"s_mov_b32 s42, 0x{OPT['thr']:08x}")
    for i in range(4): a(f"v_mov_b32 v{ONES+i}, 0x3f803f80")
    a("s_lshl_b32 s43, s26, 5")
    a("s_lshl_b32 s44, s25, 6")
    a("s_sub_i32 s43, s43, s44")
    a("v_add_u32 v9, s43, v10")
    a("v_lshlrev_b32 v14, 2, v11")
    a("v_sub_u32 v9, v9, v14")
    for r in range(64): a(f"v_mov_b32 v{O_+r}, 0")
    a(f"v_mov_b32 v{M_}, 0xf149f2ca")
    for r in range(16): a(f"v_accvgpr_write_b32 a{LA+r}, 0")
    a("s_mov_b32 s45, 0")
    a("s_lshl_b32 s51, s26, 13")
    a(f"s_add_u32 s51, s51, {SPARE}")
    a("s_sub_u32 s51, s51, s30")
    a("s_waitcnt vmcnt(8)")
    a("s_barrier")
    a("s_lshl_b32 s39, s28, 15")
    a("s_lshl_b32 s44, s24, 12")
    a("s_add_u32 s39, s39, s44")
    a("s_add_u32 s39, s39, s29")
    a(f"s_add_u32 s39, s39, {WS_Q}")
    a(f"s_add_u32 m0, s44, {SPARE}")
    a("s_nop 0")
    for q in range(4):
        a(f"buffer_load_dwordx4 v{VD}, s[16:19], s39 offen offset:{q*1024} lds")

    def kread(i, buf):
        a(f"ds_read_b128 {vr(KF+4*(i%RING),4)}, v{KA} offset:{buf*16384+i*1024}")
    def vread(i, buf):
        a(f"ds_read_b128 {vr(VF+4*(i%RING),4)}, v{KA} offset:{32768+buf*16384+i*1024}")

    def R_ops(S):
        ops = []
        for g0 in range(0, 32, 4):
            rs = [S + g0 + i for i in range(4)]
            if g0 == 0:
                ops.append(f"v_max_f32 v{MX}, v{rs[0]}, v{rs[1]}")
                ops.append(f"v_max_f32 v{MX1}, v{rs[2]}, v{rs[3]}")
            else:
                ops.append(f"v_max3_f32 v{MX}, v{rs[0]}, v{rs[1]}, v{MX}")
                ops.append(f"v_max3_f32 v{MX1}, v{rs[2]}, v{rs[3]}, v{MX1}")
        ops.append(f"v_max_f32 v{MX}, v{MX}, v{MX1}")
        ops.append(f"v_mov_b32 v{MX1}, v{MX}")
        ops.append("s_nop 1")
        ops.append(f"v_permlane32_swap_b32 v{MX}, v{MX1}")
        ops.append(f"v_max_f32 v{MX}, v{MX}, v{MX1}")
        ops.append(f"v_mul_f32 v{MX}, s41, v{MX}")
        ops.append(f"v_add_f32 v{MX1}, s42, v{M_}")
        ops.append(f"v_cmp_gt_f32 vcc, v{MX}, v{MX1}")
        return ops
    def E_ops(S):
        ops = []
        for g0 in range(0, 32, 4):
            rs = [S + g0 + i for i in range(4)]
            for r in rs: ops.append(f"v_fma_f32 v{r}, v{r}, s41, -v{M_}")
            for r in rs: ops.append(f"v_exp_f32 v{r}, v{r}")
            ops.append(f"v_cvt_pk_bf16_f32 v{P_+g0//2}, v{rs[0]}, v{rs[1]}")
            ops.append(f"v_cvt_pk_bf16_f32 v{P_+g0//2+1}, v{rs[2]}, v{rs[3]}")
        out = []
        groups = [ops[i:i+10] for i in range(0, len(ops), 10)]
        pend = []
        for gops in groups:
            out += gops[:4] + pend + gops[4:8]
            pend = gops[8:]
        out += ["s_nop 0"] + pend
        return out
    def mask_block(S):
        a(f"v_mov_b32 v14, 0x{NEG_INF:08x}")
        for g0 in range(0, 32, 8):
            for i in range(8):
                e = g0 + i; kt, r = e // 16, e % 16
                cst = (r & 3) + 8 * (r >> 2) + 32 * kt
                a(f"v_cmp_gt_i32 s[{60+2*i}:{61+2*i}], {cst}, v9")
            a("s_nop 1")
            for i in range(8):
                e = g0 + i
                a(f"v_cndmask_b32 v{S+e}, v{S+e}, v14, s[{60+2*i}:{61+2*i}]")
    def rescale(tag):
        lab = f"{name}_nors{tag}"
        a(f"s_cbranch_vccz {lab}")
        a("s_nop 7")
        a("s_nop 7")
        a(f"v_max_f32 v{MX}, v{MX}, v{M_}")
        a(f"v_sub_f32 v{MX1}, v{M_}, v{MX}")
        a(f"v_exp_f32 v{MX1}, v{MX1}")
        a(f"v_mov_b32 v{M_}, v{MX}")
        for r in range(64): a(f"v_mul_f32 v{O_+r}, v{O_+r}, v{MX1}")
        a(f"v_accvgpr_read_b32 v14, a{LA}")
        a("s_nop 0")
        a(f"v_mul_f32 v14, v14, v{MX1}")
        a("s_nop 0")
        for r in range(16): a(f"v_accvgpr_write_b32 a{LA+r}, v14")
        a("s_nop 1")
        a.label(lab)
    def nidx(dst, j):
        a(f"s_cmp_gt_u32 {j}, s37")
        a(f"s_cselect_b32 {dst}, s58, 0")
        a(f"s_sub_u32 {dst}, {j}, {dst}")
        a(f"s_lshl_b32 {dst}, {dst}, 15")
    def qk_mfma(i, Sd):
        kt, t = i // 8, i % 8
        acc = vr(Sd + 16 * kt, 16)
        a(f"v_mfma_f32_32x32x16_bf16 {acc}, {vr(KF+4*(i%RING),4)}, {ar(4*t,4)}, {'0' if t == 0 else acc}")
    def pv_mfma(i):
        s, db = i // 4, i % 4
        acc = vr(O_ + 16 * db, 16)
        a(f"v_mfma_f32_32x32x16_bf16 {acc}, {vr(VF+4*(i%RING),4)}, {vr(P_+4*s,4)}, {acc}")
    def sum_mfma(s):
        a(f"v_mfma_f32_32x32x16_bf16 {ar(LA,16)}, {vr(ONES,4)}, {vr(P_+4*s,4)}, {ar(LA,16)}")

    KPRE = 5
    for i in range(KPRE): kread(i, 0)
    for i in range(16):
        if i + KPRE < 16: kread(i + KPRE, 0)
        a(f"s_waitcnt lgkmcnt({min(KPRE, 15 - i)})")
        qk_mfma(i, S_[0])
    a("s_nop 15")
    for op in R_ops(S_[0]): a(op)
    a("s_add_u32 s38, s32, 65536")
    a("s_add_u32 s39, s33, 32768")
    a("s_waitcnt vmcnt(4)")
    a("s_barrier")
    for i in range(KPRE): kread(i, 1)

    def emit_iter(p, valu, with_qk, tag):
        slots = [("qk", i) for i in range(16)] if with_qk else []
        for s in range(4):
            slots += [("pv", 4 * s + db) for db in range(4)] + [("sum", s)]
        wt = lambda op: 0 if callable(op) else (2 if op.startswith("v_exp") else (0.5 if op.startswith("s_nop") else 1))
        tot = sum(wt(o) for o in valu)
        vi = 0; acc_w = 0.0
        def emit_until(target):
            nonlocal vi, acc_w
            while vi < len(valu) and acc_w < target:
                op = valu[vi]; vi += 1
                if callable(op): op()
                else: a(op)
                acc_w += wt(op)
        out = [("k", i) for i in range(KPRE)] if with_qk else []
        def issue(kind, i, buf):
            (kread if kind == "k" else vread)(i, buf)
            out.append((kind + ("n" if (kind == "k" and buf == p and with_qk and nextk[0]) else ""), i))
        nextk = [False]
        def wait_for(key):
            idx = out.index(key)
            n_after = len(out) - 1 - idx
            a(f"s_waitcnt lgkmcnt({n_after})")
            del out[:idx + 1]
        nk, nv = (KPRE if with_qk else 16), 0
        if not with_qk:
            for i in range(RING - 1): issue("v", i, p)
            nv = RING - 1
            emit_until(1e9)
            a("s_nop 1")
        BARX = OPT['barx']
        dmaops = dma("v", "s39", 1 - p) + dma("k", "s38", p)
        post = []
        for si, (k, i) in enumerate(slots):
            if k == "qk":
                if nk < 16: issue("k", nk, 1 - p); nk += 1
                elif nv < RING - 1: issue("v", nv, p); nv += 1
                if ("k", i) in out: wait_for(("k", i))
                qk_mfma(i, S_[1 - p])
                if i % 2 == 1:
                    for op in dmaops[i // 2]: a(op)
            elif k == "pv":
                if with_qk and i == BARX:
                    a("s_waitcnt vmcnt(0) lgkmcnt(0)")
                    out.clear()
                    a("s_barrier")
                    nextk[0] = True
                    for j in range(KPRE): issue("k", j, p)
                if nv < 16: issue("v", nv, p); nv += 1
                if ("v", i) in out: wait_for(("v", i))
                pv_mfma(i)
            else:
                sum_mfma(i)
            emit_until((tot) * (si + 1) / (len(slots) - 1.0) + 4)
        emit_until(1e9)

    def body(p):
        a.label(f"{name}_body{p}")
        rescale(f"b{p}")
        a("s_cmp_lg_u32 s45, s37")
        a(f"s_cbranch_scc1 {name}_nq{p}")
        a(f"v_add_u32 v14, s51, v{KA}")
        for t in range(8):
            a(f"ds_read_b128 {ar(4*t,4)}, v14 offset:{1024*t}")
        a("s_waitcnt lgkmcnt(0)")
        a.label(f"{name}_nq{p}")
        def book():
            a("s_add_u32 s43, s45, 2")
            nidx("s39", "s43")
            a("s_add_u32 s39, s39, s33")
            a("s_add_u32 s43, s45, 3")
            nidx("s38", "s43")
            a("s_add_u32 s38, s38, s32")
        def mask():
            a("s_add_u32 s43, s45, 1")
            a("s_cmp_eq_u32 s43, s37")
            a("s_cselect_b32 s43, 16, s43")
            a("s_cmp_lg_u32 s43, 16")
            a(f"s_cbranch_scc1 {name}_nm{p}")
            mask_block(S_[1 - p])
            a.label(f"{name}_nm{p}")
        E = E_ops(S_[p])
        emit_iter(p, E + [book, mask] + R_ops(S_[1 - p]), True, f"b{p}")
        a(f"s_mov_b32 s56, {p}")
        a("s_cmp_eq_u32 s45, s37")
        a(f"s_cbranch_scc1 {name}_merge")
        a.label(f"{name}_cont{p}")
        a("s_add_u32 s45, s45, 1")
        a("s_cmp_eq_u32 s45, 16")
        a(f"s_cbranch_scc1 {name}_tail{1-p}")
        if p == 1: a(f"s_branch {name}_body0")
    body(0)
    body(1)
    def tail(p):
        a.label(f"{name}_tail{p}")
        a("s_waitcnt lgkmcnt(0)")
        rescale(f"t{p}")
        emit_iter(p, E_ops(S_[p]), False, f"t{p}")
        a(f"s_mov_b32 s56, {p}")
        a("s_mov_b32 s37, s28")
        if p == 0: a(f"s_branch {name}_merge")
    tail(0)
    tail(1)
    a.label(name + "_merge")
    a("s_waitcnt lgkmcnt(0)")
    a("s_barrier")
    a("v_lshlrev_b32 v14, 4, v1")
    a("s_lshl_b32 s43, s24, 12")
    a(f"s_add_u32 s43, s43, {SPARE}")
    a("s_lshl_b32 s44, s56, 14")
    a("s_add_u32 s44, s44, s35")
    a("s_xor_b32 s57, s56, 1")
    a("s_lshl_b32 s57, s57, 14")
    a("s_add_u32 s57, s57, s34")
    a(f"v_add_u32 v{T_+10}, s43, v14")
    a(f"v_add_u32 v{T_+11}, s44, v14")
    a(f"v_add_u32 v{T_+12}, s57, v14")
    a(f"v_xor_b32 v{T_+13}, 0x4000, v{T_+10}")
    a(f"v_xor_b32 v{T_+14}, 0x10000, v{T_+11}")
    a(f"v_xor_b32 v{T_+15}, 0x10000, v{T_+12}")
    a("s_nop 7")
    a(f"v_accvgpr_read_b32 v{T_+3}, a{LA}")
    a(f"v_mov_b32 v{T_+2}, v{M_}")
    a("s_cmp_eq_u32 s25, 0")
    a(f"s_cbranch_scc0 {name}_wr1")
    for k in range(4): a(f"ds_write_b128 v{T_+10}, {vr(O_+32+4*k,4)} offset:{1024*k}")
    for k in range(4): a(f"ds_write_b128 v{T_+11}, {vr(O_+48+4*k,4)} offset:{1024*k}")
    a(f"s_branch {name}_wrd")
    a.label(name + "_wr1")
    for k in range(4): a(f"ds_write_b128 v{T_+10}, {vr(O_+4*k,4)} offset:{1024*k}")
    for k in range(4): a(f"ds_write_b128 v{T_+11}, {vr(O_+16+4*k,4)} offset:{1024*k}")
    a("s_nop 1")
    for r in range(32): a(f"v_mov_b32 v{O_+r}, v{O_+32+r}")
    a.label(name + "_wrd")
    a(f"ds_write_b64 v{T_+12}, v[{T_+2}:{T_+3}]")
    a("s_waitcnt lgkmcnt(0)")
    a("s_barrier")
    a(f"ds_read_b64 v[{T_+4}:{T_+5}], v{T_+15}")
    for k in range(4): a(f"ds_read_b128 {vr(O_+32+4*k,4)}, v{T_+13} offset:{1024*k}")
    for k in range(4): a(f"ds_read_b128 {vr(O_+48+4*k,4)}, v{T_+14} offset:{1024*k}")
    a("s_waitcnt lgkmcnt(8)")
    a(f"v_max_f32 v{T_+6}, v{T_+2}, v{T_+4}")
    a(f"v_sub_f32 v{T_+7}, v{T_+2}, v{T_+6}")
    a(f"v_sub_f32 v{T_+8}, v{T_+4}, v{T_+6}")
    a(f"v_exp_f32 v{T_+7}, v{T_+7}")
    a(f"v_exp_f32 v{T_+8}, v{T_+8}")
    a("s_nop 0")
    a(f"v_mul_f32 v{T_+9}, v{T_+3}, v{T_+7}")
    a(f"v_fma_f32 v{T_+9}, v{T_+5}, v{T_+8}, v{T_+9}")
    a(f"v_rcp_f32 v{T_+9}, v{T_+9}")
    a("s_nop 0")
    a(f"v_mul_f32 v{T_+7}, v{T_+7}, v{T_+9}")
    a(f"v_mul_f32 v{T_+8}, v{T_+8}, v{T_+9}")
    for r in range(32): a(f"v_mul_f32 v{O_+r}, v{O_+r}, v{T_+7}")
    a("s_waitcnt lgkmcnt(0)")
    a("s_barrier")
    for r in range(32): a(f"v_fma_f32 v{O_+r}, v{O_+32+r}, v{T_+8}, v{O_+r}")
    for k in range(16): a(f"v_cvt_pk_bf16_f32 v{O_+32+k}, v{O_+2*k}, v{O_+2*k+1}")
    a("s_lshl_b32 s43, s37, 2")
    a("s_add_u32 s43, s43, s26")
    a("s_lshl_b32 s43, s43, 18")
    a("s_lshl_b32 s44, s27, 13")
    a("s_add_u32 s43, s43, s44")
    a("s_lshl_b32 s44, s25, 12")
    a("s_add_u32 s43, s43, s44")
    a(f"s_add_u32 s43, s43, {WS_CTX}")
    for k in range(4):
        a(f"buffer_store_dwordx4 {vr(O_+32+4*k,4)}, v{VD}, s[16:19], s43 offen offset:{1024*k} sc0 sc1")
    a("s_cmp_eq_u32 s45, 16")
    a(f"s_cbranch_scc1 {name}_done")
    a("s_nop 1")
    for r in range(64): a(f"v_mov_b32 v{O_+r}, 0")
    a(f"v_mov_b32 v{M_}, 0xf149f2ca")
    for r in range(16): a(f"v_accvgpr_write_b32 a{LA+r}, 0")
    a(f"v_add_f32 v{MX1}, s42, v{M_}")
    a(f"v_cmp_gt_f32 vcc, v{MX}, v{MX1}")
    a("s_cmp_eq_u32 s56, 0")
    a(f"s_cbranch_scc1 {name}_cont0")
    a(f"s_branch {name}_cont1")
    a.label(name + "_done")
    a("s_endpgm")
    return kernel_desc(name, 256, 208)
```

```python
from common import *

DMAPOS=[1,3,5,7]
def gen_gemm1(a, name="qkv_kernel"):
    R, P = 8, 6
    ACC = [16, 32]
    FR = 48
    PK = [80, 88]
    kernel_header(a, name)
    a("s_cmp_ge_u32 s2, 256")
    a("s_cbranch_scc1 " + name + "_done")
    a("s_load_dwordx4 s[36:39], s[0:1], 0")
    a("s_load_dwordx4 s[40:43], s[0:1], 16")
    a("s_load_dwordx4 s[60:63], s[0:1], 32")
    a("s_load_dwordx2 s[46:47], s[0:1], 136")
    a("v_and_b32 v1, 63, v0")
    a("v_lshrrev_b32 v9, 6, v0")
    a("s_nop 0")
    a("v_readfirstlane_b32 s24, v9")
    a("s_and_b32 s25, s2, 7")
    a("s_lshl_b32 s25, s25, 2")
    a("s_lshr_b32 s26, s2, 3")
    a("s_and_b32 s26, s26, 3")
    a("s_add_u32 s25, s25, s26")
    a("s_lshr_b32 s26, s2, 5")
    a("s_cmp_lt_u32 s25, 11")
    a("s_cbranch_scc0 " + name + "_kv")
    a("s_mul_i32 s30, s25, 12")
    a("s_sub_i32 s27, s25, 7")
    a("s_max_i32 s27, s27, 0")
    a("s_sub_u32 s30, s30, s27")
    a("s_cmp_lt_u32 s25, 7")
    a("s_cselect_b32 s27, 12, 11")
    a("s_add_u32 s31, s30, s27")
    a("s_waitcnt lgkmcnt(0)")
    srd(a, 8, 36, 2097152)
    srd(a, 12, 40, 4194304)
    srd(a, 20, 40, 4194304)
    a(f"s_mov_b32 s29, {WS_Q}")
    a("s_sub_u32 s57, s25, 7")
    a("s_branch " + name + "_go")
    a.label(name + "_kv")
    a("s_sub_u32 s25, s25, 11")
    a("s_mul_i32 s30, s25, 12")
    a("s_min_u32 s27, s25, 4")
    a("s_add_u32 s30, s30, s27")
    a("s_cmp_lt_u32 s25, 4")
    a("s_cselect_b32 s27, 13, 12")
    a("s_add_u32 s31, s30, s27")
    a("s_waitcnt lgkmcnt(0)")
    srd(a, 8, 38, 2097152)
    srd(a, 12, 42, 4194304)
    srd(a, 20, 60, 4194304)
    a(f"s_mov_b32 s29, {WS_K}")
    a("s_mov_b32 s57, -1")
    a.label(name + "_go")
    srd(a, 16, 46, WS_BYTES)
    a("s_lshl_b32 s32, s26, 8")
    a("s_lshl_b32 s27, s24, 5")
    a("s_add_u32 s32, s32, s27")
    a("v_and_b32 v10, 31, v1")
    a("v_lshrrev_b32 v11, 5, v1")
    a("v_lshrrev_b32 v12, 3, v1")
    a("s_lshl_b32 s27, s24, 5")
    a("v_add_u32 v12, s27, v12")
    a("v_lshlrev_b32 v12, 13, v12")
    a("v_and_b32 v13, 7, v1")
    a("v_bfe_u32 v14, v1, 4, 1")
    a("v_lshlrev_b32 v14, 2, v14")
    a("v_xor_b32 v13, v13, v14")
    a("v_lshl_add_u32 v4, v13, 4, v12")
    a("v_lshrrev_b32 v12, 3, v1")
    a("v_add_u32 v12, s32, v12")
    a("v_lshlrev_b32 v12, 10, v12")
    a("v_and_b32 v13, 7, v1")
    a("v_lshrrev_b32 v14, 4, v1")
    a("v_xor_b32 v13, v13, v14")
    a("v_lshl_add_u32 v7, v13, 4, v12")
    a("v_xor_b32 v15, 64, v7")
    a("v_bfe_u32 v12, v10, 1, 3")
    a("v_xor_b32 v12, v12, v11")
    a("v_lshlrev_b32 v12, 4, v12")
    a("v_lshl_add_u32 v12, v10, 7, v12")
    a("s_mul_i32 s27, s24, 12288")
    a("s_add_u32 s27, s27, 65536")
    a("v_add_u32 v96, s27, v12")
    a("v_xor_b32 v97, 32, v96")
    a("v_xor_b32 v98, 64, v96")
    a("v_xor_b32 v99, 96, v96")
    a("s_mov_b32 s52, s27")
    a("s_lshl_b32 s34, s24, 12")
    a("s_mov_b32 s53, 0")

    def dma_w_setup():
        a("s_lshr_b32 s27, s53, 1")
        a("s_lshl_b32 s27, s27, 1")
        a("s_add_u32 s27, s27, s56")
        a("s_cmp_ge_u32 s27, 128")
        a("s_cselect_b32 s12, s20, s12")
        a("s_cselect_b32 s13, s21, s13")
        a("s_and_b32 s27, s27, 127")
        a("s_lshl_b32 s54, s27, 6")
        a("s_and_b32 s27, s53, 1")
        a("s_lshl_b32 s27, s27, 21")
        a("s_add_u32 s54, s54, s27")
        a("s_and_b32 s27, s53, 3")
        a("s_lshl_b32 s27, s27, 15")
        a("s_add_u32 s55, s27, s34")
        a("s_add_u32 s53, s53, 1")
    def dma_w(q):
        return [f"s_add_u32 m0, s55, {q*1024}",
                f"s_add_u32 s35, s54, {q*65536}",
                "buffer_load_dwordx4 v4, s[12:15], s35 offen lds"]
    a("s_mov_b32 s56, s30")
    def dma_x(p):
        reg = p % 3
        for q in range(4):
            a(f"s_add_u32 m0, s52, {reg*4096+q*1024}")
            a(f"s_mov_b32 s35, {q*8192 + p*128}")
            a(f"buffer_load_dwordx4 {'v7' if q%2==0 else 'v15'}, s[8:11], s35 offen lds")
    for st in range(2):
        dma_w_setup()
        for q in range(4):
            for op in dma_w(q): a(op)
        dma_x(st)
    dma_x(2)
    a("s_lshl_b32 s27, s32, 8")
    a("v_lshlrev_b32 v5, 4, v1")
    a("v_add_u32 v5, s27, v5")
    a("v_add_u32 v6, 0x1000, v5")
    a("v_lshrrev_b32 v12, 5, v1")
    a("v_lshlrev_b32 v12, 3, v12")
    a("v_bfe_u32 v13, v1, 2, 2")
    a("v_add_u32 v12, v12, v13")
    a("v_lshlrev_b32 v12, 7, v12")
    a("v_bfe_u32 v13, v1, 3, 1")
    a("v_lshl_add_u32 v12, v13, 6, v12")
    a("v_bfe_u32 v13, v1, 4, 1")
    a("v_lshl_add_u32 v12, v13, 5, v12")
    a("v_and_b32 v13, 3, v1")
    a("v_lshl_add_u32 v2, v13, 3, v12")
    a("v_xor_b32 v3, 64, v2")
    a("v_mov_b32 v8, 0")
    a("v_add_u32 v103, 0x400, v5")
    a("s_mov_b32 s33, 0x10000000")
    def epi(acc, pk, voffs, soff):
        ops = []
        for g in range(2):
            for i in range(4):
                ops.append(f"v_cvt_pk_bf16_f32 v{pk+4*g+i}, v{acc+8*g+2*i}, v{acc+8*g+2*i+1}")
            ops.append(f"buffer_store_dwordx4 {vr(pk+4*g,4)}, {voffs[g]}, s[16:19], {soff} offen sc0 sc1")
        return ops

    def seq(full):
        s = []
        for stg in range(2):
            for nb in ((0, 1) if full else (0,)):
                for tt in range(16):
                    s.append((stg, nb, stg * 16 + tt))
        return s
    def rd(fr, slotidx, nextchunk=False):
        stg, nb, t = fr
        slot = FR + 4 * (slotidx % R)
        base = ("v2" if nb == 0 else "v3") if not nextchunk else ("v100" if nb == 0 else "v101")
        off = stg * 32768 + (t % 16) * 2048
        a(f"ds_read_b64_tr_b16 {vr(slot,2)}, {base} offset:{off}")
        a(f"ds_read_b64_tr_b16 {vr(slot+2,2)}, {base} offset:{off+512}")

    def offs(isV):
        for nb, sg in ((0, 50), (1, 51)):
            a(f"s_add_u32 s27, s49, {32*nb}")
            a(f"s_lshr_b32 s{sg}, s27, 7")
            a(f"s_lshl_b32 s{sg}, s{sg}, 19")
            a("s_and_b32 s27, s27, 127")
            a(f"s_lshl_b32 s27, s27, {5 if isV else 6}")
            a(f"s_add_u32 s{sg}, s{sg}, s27")
            a(f"s_add_u32 s{sg}, s{sg}, {WS_VT if isV else 's29'}")
        return ("v5", "v6") if isV else ("v5", "v103")
    def mfma(isV, nb, t, slot):
        acc = vr(ACC[nb], 16)
        cin = "0" if t == 0 else acc
        if isV: a(f"v_mfma_f32_32x32x16_bf16 {acc}, {ar(4*t,4)}, {vr(slot,4)}, {cin}")
        else: a(f"v_mfma_f32_32x32x16_bf16 {acc}, {vr(slot,4)}, {ar(4*t,4)}, {cin}")
    a("s_and_b32 s49, s30, 127")
    a("s_lshl_b32 s49, s49, 5")
    a("s_waitcnt vmcnt(16)")
    a("s_barrier")
    a("s_cmp_ge_u32 s30, 128")
    a("s_cbranch_scc1 " + name + "_firstV")
    def first(isV):
        voff = offs(isV)
        for p in range(8):
            a(f"s_waitcnt vmcnt({12 if p == 0 else 4*min(2, 7-p)})")
            if p == 4: a("s_barrier")
            for b in range(4):
                a(f"ds_read_b128 {ar(16*p+4*b,4)}, v{96+b} offset:{(p%3)*4096}")
            fr = [(p // 4, nb, 4 * p + b) for b in range(4) for nb in range(2)]
            for f in range(4): rd(fr[f], f)
            a("s_waitcnt lgkmcnt(8)")
            if p + 3 < 8: dma_x(p + 3)
            for f in range(8):
                if f + 4 < 8: rd(fr[f + 4], f + 4)
                a(f"s_waitcnt lgkmcnt({2*min(4, 7-f)})")
                mfma(isV, fr[f][1], fr[f][2], FR + 4 * f)
        a("s_barrier")
        for st in range(2):
            dma_w_setup()
            for q in range(4):
                for op in dma_w(q): a(op)
        for op in epi(ACC[0], PK[0], voff, "s50"): a(op)
        a(f"v_mov_b32 v8, {voff[1]}")
        a("s_mov_b32 s33, s51")
    first(False)
    a("s_branch " + name + "_firstd")
    a.label(name + "_firstV")
    first(True)
    a.label(name + "_firstd")
    dma_w_setup()
    for q in range(4):
        for op in dma_w(q): a(op)
    a("s_mov_b32 s27, 0x10000000")
    a("buffer_store_dwordx4 v[80:83], v5, s[16:19], s27 offen")
    a("buffer_store_dwordx4 v[80:83], v5, s[16:19], s27 offen")
    a("v_xor_b32 v2, 0x10000, v2")
    a("v_xor_b32 v3, 0x10000, v3")
    a("s_add_u32 s30, s30, 2")
    a("s_waitcnt vmcnt(12)")
    a("s_barrier")
    S = seq(True)
    for f in range(P): rd(S[f], f)
    a.label(name + "_loop")
    a("v_xor_b32 v100, 0x10000, v2")
    a("v_xor_b32 v101, 0x10000, v3")
    a("s_and_b32 s49, s30, 127")
    a("s_lshl_b32 s49, s49, 5")
    a("s_cmp_ge_u32 s30, 128")
    a("s_cbranch_scc1 " + name + "_bodyV")
    a("s_add_u32 s27, s30, 1")
    a("s_cmp_ge_u32 s27, s31")
    a("s_cbranch_scc1 " + name + "_bodyH")

    def body(isV, full, first_barrier_skipped=False):
        for nb, sg in ((0, 50), (1, 51)):
            a(f"s_add_u32 s27, s49, {32*nb}")
            a(f"s_lshr_b32 s{sg}, s27, 7")
            a(f"s_lshl_b32 s{sg}, s{sg}, 19")
            a("s_and_b32 s27, s27, 127")
            a(f"s_lshl_b32 s27, s27, {5 if isV else 6}")
            a(f"s_add_u32 s{sg}, s{sg}, s27")
            a(f"s_add_u32 s{sg}, s{sg}, {WS_VT if isV else 's29'}")
        voff = ("v5", "v6") if isV else ("v5", "v103")
        S = seq(full)
        n = len(S)
        half = n // 2
        extra = {}
        def put(pos, ops):
            for i, op in enumerate(ops): extra.setdefault(pos + i // 2, []).append(op)
        for stg in range(2):
            st0 = stg * half
            for q in range(4):
                extra.setdefault(st0 + DMAPOS[q], []).extend(dma_w(q))
        put(8, epi(ACC[1], PK[1], ("v5", "v8"), "s33"))
        if full:
            put(48 + 5, epi(ACC[0], PK[0], voff, "s50"))
        for f in range(n):
            stg, nb, t = S[f]
            if f % half == 0:
                a("s_waitcnt vmcnt(8)")
                a("s_barrier")
                dma_w_setup()
            if f + P < n: rd(S[f + P], f + P)
            elif full: rd(S[f + P - n], f + P, nextchunk=True)
            rem = P if full else min(P, n - 1 - f)
            a(f"s_waitcnt lgkmcnt({2*rem})")
            slot = FR + 4 * (f % R)
            acc = vr(ACC[nb], 16)
            cin = "0" if t == 0 else acc
            if isV:
                a(f"v_mfma_f32_32x32x16_bf16 {acc}, {ar(4*t,4)}, {vr(slot,4)}, {cin}")
            else:
                a(f"v_mfma_f32_32x32x16_bf16 {acc}, {vr(slot,4)}, {ar(4*t,4)}, {cin}")
            for op in extra.get(f, []): a(op)
        if full:
            a(f"v_mov_b32 v8, {voff[1]}")
            a("s_mov_b32 s33, s51")
            a("s_branch " + name + "_next")
        else:
            a("s_nop 15")
            for op in epi(ACC[0], PK[0], voff, "s50"): a(op)
            a("s_cmp_ge_i32 s57, 0")
            a("s_cbranch_scc1 " + name + "_wot")
            a("s_branch " + name + "_done")
    body(False, True)
    a.label(name + "_bodyH")
    body(False, False)
    a.label(name + "_bodyV")
    body(True, True)
    a.label(name + "_next")
    a("v_mov_b32 v2, v100")
    a("v_mov_b32 v3, v101")
    a("s_add_u32 s30, s30, 2")
    a("s_cmp_lt_u32 s30, s31")
    a("s_cbranch_scc1 " + name + "_loop")
    a("s_nop 15")
    for op in epi(ACC[1], PK[1], ("v5", "v8"), "s33"): a(op)
    a("s_branch " + name + "_done")
    a.label(name + "_wot")
    srd(a, 12, 62, 4194304)
    a("s_lshl_b32 s57, s57, 3")
    a("s_add_u32 s57, s57, s26")
    a("s_lshl_b32 s57, s57, 3")
    a("s_add_u32 s57, s57, s24")
    a("s_waitcnt vmcnt(0) lgkmcnt(0)")
    a("s_barrier")
    a("v_lshlrev_b32 v4, 4, v1")
    a("s_lshl_b32 s54, s57, 14")
    a("s_lshl_b32 s55, s24, 14")
    for r in range(16):
        a(f"s_add_u32 m0, s55, {r*1024}")
        a(f"s_add_u32 s35, s54, {r*1024}")
        a("buffer_load_dwordx4 v4, s[12:15], s35 offen lds")
    a("v_lshrrev_b32 v12, 5, v1")
    a("v_lshlrev_b32 v12, 2, v12")
    a("v_bfe_u32 v13, v1, 2, 2")
    a("v_add_u32 v12, v12, v13")
    a("v_lshlrev_b32 v12, 10, v12")
    a("v_bfe_u32 v13, v1, 4, 1")
    a("v_lshl_add_u32 v12, v13, 5, v12")
    a("v_and_b32 v13, 3, v1")
    a("v_lshl_add_u32 v12, v13, 3, v12")
    a("v_add_u32 v12, s55, v12")
    a("s_lshl_b32 s54, s57, 10")
    a(f"s_add_u32 s54, s54, {WS_WOT}")
    a("s_waitcnt vmcnt(0)")
    for mb in range(16):
        a(f"ds_read_b64_tr_b16 {vr(16+4*mb,2)}, v12 offset:{mb*64}")
        a(f"ds_read_b64_tr_b16 {vr(18+4*mb,2)}, v12 offset:{mb*64+8192}")
        if mb % 4 == 3:
            a("s_waitcnt lgkmcnt(0)")
            for m2 in range(mb - 3, mb + 1):
                a(f"s_add_u32 s35, s54, {m2*262144}")
                a(f"buffer_store_dwordx4 {vr(16+4*m2,4)}, v4, s[16:19], s35 offen sc0 sc1")
    a.label(name + "_done")
    a("s_endpgm")
    return kernel_desc(name, 256, 128)

if __name__ == "__main__":
    a = Asm()
    a.raw("; @launch kernel=qkv_kernel grid=(256,1,1) block=(512,1,1) lds=163840")
    a.raw('.amdgcn_target "amdgcn-amd-amdhsa--gfx950"')
    a.raw(".text")
    d = gen_gemm1(a)
    a.raw('.section .rodata,"a"')
    a.raw(d)
    open("g1.s", "w").write(a.text())
```

```python
from common import *

DB = 36864
UOFF = 18432
UP = 4416
ROWP = 144
POFF = 10240

def gen_ssm_body(a, name, wg_sgpr="s3"):
    L = lambda s: f"{name}_{s}"
    a("s_setprio 3")
    a("s_load_dwordx4 s[36:39], s[0:1], 48")
    a("s_load_dwordx4 s[40:43], s[0:1], 64")
    a("s_load_dwordx4 s[44:47], s[0:1], 80")
    a("s_load_dwordx4 s[48:51], s[0:1], 96")
    a("s_load_dwordx4 s[52:55], s[0:1], 112")
    a("v_and_b32 v1, 63, v0")
    a("v_lshrrev_b32 v2, 6, v0")
    a("s_nop 0")
    a("v_readfirstlane_b32 s24, v2")
    a("s_lshr_b32 s25, s24, 1")
    a("s_and_b32 s26, s24, 1")
    a(f"s_and_b32 s27, {wg_sgpr}, 7")
    a("s_lshl_b32 s27, s27, 6")
    a(f"s_lshr_b32 s28, {wg_sgpr}, 3")
    a("s_lshl_b32 s28, s28, 1")
    a("s_add_u32 s27, s27, s28")
    a("s_add_u32 s28, s27, s25")
    a(f"s_mul_i32 s29, s25, {DB}")
    a("v_and_b32 v10, 31, v1")
    a("v_lshrrev_b32 v11, 5, v1")
    a("v_lshlrev_b32 v7, 1, v1")
    a("v_mov_b32 v4, 0")
    a("s_lshl_b32 s31, s28, 8")
    a("s_lshl_b32 s32, s26, 7")
    a("s_add_u32 s31, s31, s32")
    a("s_lshl_b32 s32, s28, 1")
    a("s_lshl_b32 s30, s27, 1")
    a("s_waitcnt lgkmcnt(0)")
    PS = (12, 16, 20, 56, 60, 64)
    for p, src in enumerate((38, 40, 42, 44, 46, 48)):
        srd(a, PS[p], src, 131072)
        a(f"buffer_load_ushort v{232+p}, v7, s[{PS[p]}:{PS[p]+3}], s31 offen")
    srd(a, 68, 50, 1024)
    a("buffer_load_ushort v5, v4, s[68:71], s32 offen")
    srd(a, 8, 36, 2097152)
    a("v_lshlrev_b32 v3, 10, v0")
    for i in range(8):
        a(f"s_add_u32 s31, s30, {i*262144}")
        a(f"buffer_load_dword v{240+i}, v3, s[8:11], s31 offen")
    srd(a, 72, 52, 1024)
    a("buffer_load_dword v248, v4, s[72:75], s30 offen")
    srd(a, 76, 54, 4194304)
    for r in range(4): a(f"v_mov_b32 v{12+r}, 0")
    a("v_lshlrev_b32 v8, 4, v0")
    a(f"v_add_u32 v9, {DB}, v8")
    for i in range(9):
        a(f"ds_write_b128 v8, v[12:15] offset:{4096*i}")
        a(f"ds_write_b128 v9, v[12:15] offset:{4096*i}")
    a("s_mov_b32 s33, 0x3FB8AA3B")
    a("s_mov_b32 s34, 0x3E22F983")
    a("v_cvt_f32_u32 v16, v10")
    a("v_lshlrev_b32 v17, 5, v10")
    a("v_cvt_f32_u32 v17, v17")
    ACC = 32
    for r in range(32): a(f"v_mov_b32 v{ACC+r}, 0")
    def cexp(re, im, zr, zi, T, tmp):
        a(f"v_mul_f32 v{tmp}, v{zr}, {T}")
        a(f"v_mul_f32 v{im}, v{zi}, {T}")
        a(f"v_exp_f32 v{tmp}, v{tmp}")
        a(f"v_fract_f32 v{im}, v{im}")
        a(f"v_cos_f32 v{re}, v{im}")
        a(f"v_sin_f32 v{im}, v{im}")
        a("s_nop 0")
        a(f"v_mul_f32 v{re}, v{re}, v{tmp}")
        a(f"v_mul_f32 v{im}, v{im}, v{tmp}")
    def cmul(dr, di_, ar_, ai, br, bi, neg_im=False):
        a(f"v_mul_f32 v{dr}, v{ar_}, v{br}")
        a(f"v_fma_f32 v{dr}, -v{ai}, v{bi}, v{dr}")
        if neg_im:
            a(f"v_mul_f32 v{di_}, -v{ar_}, v{bi}") if False else a(f"v_mul_f32_e64 v{di_}, -v{ar_}, v{bi}")
            a(f"v_fma_f32 v{di_}, -v{ai}, v{br}, v{di_}")
        else:
            a(f"v_mul_f32 v{di_}, v{ar_}, v{bi}")
            a(f"v_fma_f32 v{di_}, v{ai}, v{br}, v{di_}")
    def split(hi, lo, x0, x1, t0, t1):
        a(f"v_cvt_pk_bf16_f32 v{hi}, v{x0}, v{x1}")
        a(f"v_lshlrev_b32 v{t0}, 16, v{hi}")
        a(f"v_and_b32 v{t1}, 0xffff0000, v{hi}")
        a(f"v_sub_f32 v{t0}, v{x0}, v{t0}")
        a(f"v_sub_f32 v{t1}, v{x1}, v{t1}")
        a(f"v_cvt_pk_bf16_f32 v{lo}, v{t0}, v{t1}")
    a("s_waitcnt vmcnt(9)")
    a("v_lshlrev_b32 v5, 16, v5")
    a("v_mul_f32 v5, s33, v5")
    a("v_exp_f32 v5, v5")
    for p in range(6): a(f"v_lshlrev_b32 v{232+p}, 16, v{232+p}")
    a("v_cvt_pk_bf16_f32 v5, 0, v5")
    a("v_mul_f32 v112, v5, v232")
    a("v_mul_f32 v113, v5, v233")
    a("v_mul_f32 v234, v5, v234")
    a("v_mul_f32 v235, v5, v235")
    a("v_mul_f32 v112, s33, v112")
    a("v_mul_f32 v113, s34, v113")
    cmul(114, 115, 236, 237, 234, 235)
    a("v_mov_b32 v19, 0x44800000")
    cexp(116, 117, 112, 113, "v19", 25)
    cmul(120, 121, 116, 117, 116, 117)
    a("v_mul_f32 v122, v114, v120")
    a("v_fma_f32 v122, -v115, v121, v122")
    a("s_waitcnt lgkmcnt(0)")
    a("s_barrier")
    a("s_lshl_b32 s31, s26, 11")
    a("s_add_u32 s31, s31, s29")
    a(f"s_add_u32 s31, s31, {POFF}")
    a("v_lshlrev_b32 v8, 5, v1")
    a("v_add_u32 v8, s31, v8")
    a("ds_write_b128 v8, v[112:115]")
    a("ds_write_b64 v8, v[116:117] offset:16")
    for off in (0x041F, 0x081F, 0x101F, 0x201F, 0x401F):
        a(f"ds_swizzle_b32 v123, v122 offset:{off}")
        a("s_waitcnt lgkmcnt(0)")
        a("v_add_f32 v122, v122, v123")
    a("v_mov_b32 v123, v122")
    a("s_nop 1")
    a("v_permlane32_swap_b32 v122, v123")
    a("v_add_f32 v249, v122, v123")
    a("v_lshlrev_b32 v8, 1, v0")
    a(f"v_add_u32 v9, {DB}, v8")
    a("s_waitcnt vmcnt(0)")
    a("s_setprio 0")
    for i in range(8):
        for phi in range(4):
            off = UOFF + phi * UP + (256 * i + 64 - phi) * 2
            a(f"ds_write_b16 v8, v{240+i} offset:{off}")
            a(f"ds_write_b16_d16_hi v9, v{240+i} offset:{off}")
    AF = lambda rt, c, h: 64 + ((rt * 2 + c) * 2 + h) * 4
    BF = lambda c, h: 96 + (c * 2 + h) * 4
    a("v_lshlrev_b32 v8, 8, v11")
    a("v_add_u32 v8, s31, v8")
    a("s_mov_b32 s35, 4")
    a("s_waitcnt lgkmcnt(0)")
    a.label(L('kg'))
    PRM = 128
    for j in range(8):
        a(f"ds_read_b128 {vr(PRM+8*j,4)}, v8 offset:{32*j}")
        a(f"ds_read_b64 {vr(PRM+8*j+4,2)}, v8 offset:{32*j+16}")
    for jp in range(4):
        a(f"s_waitcnt lgkmcnt({12-4*jp})")
        p0, p1 = PRM + 16 * jp, PRM + 16 * jp + 8
        cexp(112, 113, p0, p0 + 1, "v17", 25)
        cexp(114, 115, p1, p1 + 1, "v17", 26)
        cmul(116, 117, 112, 113, p0 + 4, p0 + 5)
        cmul(118, 119, 114, 115, p1 + 4, p1 + 5)
        cexp(120, 121, p0, p0 + 1, "v16", 25)
        cexp(122, 123, p1, p1 + 1, "v16", 26)
        cmul(124, 125, p0 + 2, p0 + 3, 120, 121, neg_im=True)
        cmul(126, 127, p1 + 2, p1 + 3, 122, 123, neg_im=True)
        split(AF(0, 0, 0) + jp, AF(0, 0, 1) + jp, 112, 114, 25, 26)
        split(AF(0, 1, 0) + jp, AF(0, 1, 1) + jp, 113, 115, 27, 28)
        split(AF(1, 0, 0) + jp, AF(1, 0, 1) + jp, 116, 118, 25, 26)
        split(AF(1, 1, 0) + jp, AF(1, 1, 1) + jp, 117, 119, 27, 28)
        split(BF(0, 0) + jp, BF(0, 1) + jp, 124, 126, 25, 26)
        split(BF(1, 0) + jp, BF(1, 1) + jp, 125, 127, 27, 28)
    a("v_add_u32 v8, 512, v8")
    a("s_nop 0")
    for rt in range(2):
        acc = vr(ACC + 16 * rt, 16)
        for c in range(2):
            for (ha, hb) in ((1, 0), (0, 1), (0, 0)):
                a(f"v_mfma_f32_32x32x16_bf16 {acc}, {vr(AF(rt,c,ha),4)}, {vr(BF(c,hb),4)}, {acc}")
    a("s_sub_u32 s35, s35, 1")
    a("s_cmp_lg_u32 s35, 0")
    a(f"s_cbranch_scc1 {L('kg')}")
    a("s_barrier")
    a("v_lshrrev_b32 v8, 4, v10")
    a("v_add_u32 v8, v8, v10")
    a("v_mul_u32_u24 v9, 136, v11")
    a("v_add_u32 v8, v8, v9")
    a("s_mul_i32 s31, s26, 9216")
    a("s_add_u32 s31, s31, s29")
    a("v_lshl_add_u32 v8, v8, 2, s31")
    a("v_mov_b32 v9, s31")
    a("s_nop 7")
    for rt in range(2):
        for r in range(16):
            i = (r & 3) + 8 * (r >> 2) + 32 * rt
            a(f"ds_write_b32 v8, v{ACC+16*rt+r} offset:{i*136}")
    a(f"ds_write_b32 v9, v249 offset:{(2048+128)*4}")
    a("s_lshl_b32 s31, s26, 6")
    a("v_add_u32 v8, s31, v1")
    a("v_lshlrev_b32 v9, 4, v8")
    for e in range(16):
        a(f"v_add_u32 v{64+e}, {e}, v9")
        a(f"v_cvt_f32_u32 v{64+e}, v{64+e}")
        a(f"v_cvt_pk_bf16_f32 v{64+e}, 0, v{64+e}")
        a(f"v_cvt_u32_f32 v{64+e}, v{64+e}")
        a(f"v_lshrrev_b32 v80, 4, v{64+e}")
        a(f"v_add_u32 v{64+e}, v{64+e}, v80")
        a(f"v_lshl_add_u32 v{64+e}, v{64+e}, 2, s29")
    a("s_waitcnt lgkmcnt(0)")
    a("s_barrier")
    for e in range(16):
        a(f"ds_read_b32 v{80+e}, v{64+e} offset:9216")
        a(f"ds_read_b32 v{64+e}, v{64+e}")
        if e % 4 == 3:
            a("s_waitcnt lgkmcnt(0)")
            for e2 in range(e - 3, e + 1): a(f"v_add_f32 v{64+e2}, v{64+e2}, v{80+e2}")
    a("v_lshrrev_b32 v9, 1, v8")
    a("v_add_u32 v9, 63, v9")
    a(f"v_mul_u32_u24 v9, {ROWP}, v9")
    a("v_and_b32 v12, 1, v8")
    a("v_lshl_add_u32 v9, v12, 5, v9")
    a("v_add_u32 v9, s29, v9")
    a("s_waitcnt lgkmcnt(0)")
    a("s_barrier")
    for G in range(2):
        for q in range(4):
            e1, e0 = 64 + 8 * G + 7 - 2 * q, 64 + 8 * G + 6 - 2 * q
            split(96 + 8 * G + q, 100 + 8 * G + q, e1, e0, 25, 26)
    for G in range(2):
        a(f"ds_write_b128 v9, {vr(96+8*G,4)} offset:{16*G}")
        a(f"ds_write_b128 v9, {vr(100+8*G,4)} offset:{16*G+64}")
    for r in range(4): a(f"v_mov_b32 v{12+r}, 0")
    a("v_lshlrev_b32 v8, 4, v8")
    a("v_add_u32 v8, s29, v8")
    for i in range(4): a(f"ds_write_b128 v8, v[12:15] offset:{2048*i}")
    a("v_cmp_gt_u32 vcc, 55, v1")
    a("s_cmp_eq_u32 s26, 0")
    a("s_cselect_b64 s[80:81], vcc, 0")
    a("s_and_saveexec_b64 s[82:83], s[80:81]")
    a(f"s_cbranch_execz {L('z1')}")
    a("ds_write_b128 v8, v[12:15] offset:8192")
    a.label(L('z1'))
    a("s_mov_b64 exec, s[82:83]")
    a("v_add_u32 v8, 57, v10")
    a("v_and_b32 v9, 3, v8")
    a("v_lshrrev_b32 v8, 2, v8")
    a("v_lshlrev_b32 v12, 1, v11")
    a("v_sub_u32 v8, v8, v12")
    a("v_lshlrev_b32 v8, 3, v8")
    a(f"v_mul_u32_u24 v9, {UP}, v9")
    a("v_add_u32 v8, v8, v9")
    a(f"s_add_u32 s31, s29, {UOFF-32}")
    a("v_add_u32 v8, s31, v8")
    a(f"v_mul_u32_u24 v9, {ROWP}, v10")
    a("v_lshl_add_u32 v9, v11, 4, v9")
    a(f"s_add_u32 s31, s29, {62*ROWP}")
    a("v_add_u32 v9, s31, v9")
    for r in range(32): a(f"v_mov_b32 v{ACC+r}, 0")
    a("s_waitcnt lgkmcnt(0)")
    a("s_barrier")
    def rdset(b, nts, dl):
        base = 64 + 40 * b
        for s in range(2):
            a(f"ds_read_b64 {vr(base+4*s,2)}, v8 offset:{32-32*s+64*dl}")
            a(f"ds_read_b64 {vr(base+2+4*s,2)}, v8 offset:{40-32*s+64*dl}")
            for k in range(nts):
                for h in range(2):
                    a(f"ds_read_b128 {vr(base+8+16*s+8*k+4*h,4)}, v9 offset:{k*32*ROWP+32*s+64*h+ROWP*(1-dl)}")
    def mm(b, nts):
        base = 64 + 40 * b
        n1 = 2 + 2 * nts
        for s in range(2):
            a(f"s_waitcnt lgkmcnt({2*n1 + n1*(1-s) if 2*n1 + n1*(1-s) <= 15 else 15})") if False else None
        for s in range(2):
            for k in range(nts):
                acc = vr(ACC + 16 * k, 16)
                for h in range(2):
                    a(f"v_mfma_f32_32x32x16_bf16 {acc}, {vr(base+4*s,4)}, {vr(base+8+16*s+8*k+4*h,4)}, {acc}")
    def conv_loop(tag, nts, count_sgpr):
        n = 2 * (2 + 2 * nts)
        rdset(0, nts, 0)
        a.label(L(tag))
        rdset(1, nts, 1)
        a(f"s_waitcnt lgkmcnt({n})")
        mm(0, nts)
        a("v_add_u32 v8, 128, v8")
        a(f"v_subrev_u32 v9, {2*ROWP}, v9")
        rdset(0, nts, 0)
        a(f"s_waitcnt lgkmcnt({n})")
        mm(1, nts)
        a(f"s_sub_u32 {count_sgpr}, {count_sgpr}, 1")
        a(f"s_cmp_lg_u32 {count_sgpr}, 0")
        a(f"s_cbranch_scc1 {L(tag)}")
        a("s_waitcnt lgkmcnt(0)")
    a("s_cmp_eq_u32 s26, 0")
    a(f"s_cbranch_scc0 {L('w1')}")
    a("s_mov_b32 s35, 8")
    conv_loop('c2', 2, "s35")
    a("s_mov_b32 s35, 8")
    a(f"s_branch {L('c1e')}")
    a.label(L('w1'))
    a("v_add_u32 v8, 1024, v8")
    a(f"v_add_u32 v9, {16*ROWP}, v9")
    a("s_mov_b32 s35, 24")
    a.label(L('c1e'))
    conv_loop('c1', 1, "s35")
    a("s_nop 15")
    a("s_barrier")
    a("v_lshlrev_b32 v8, 4, v1")
    a("v_add_u32 v8, s29, v8")
    a("s_cmp_eq_u32 s26, 0")
    a(f"s_cbranch_scc0 {L('x1')}")
    for k in range(4): a(f"ds_write_b128 v8, {vr(ACC+16+4*k,4)} offset:{1024*k}")
    a.label(L('x1'))
    a("s_waitcnt lgkmcnt(0)")
    a("s_barrier")
    a("s_cmp_eq_u32 s26, 0")
    a(f"s_cbranch_scc1 {L('x2')}")
    for k in range(4): a(f"ds_read_b128 {vr(64+4*k,4)}, v8 offset:{1024*k}")
    a("s_waitcnt lgkmcnt(0)")
    for r in range(16): a(f"v_add_f32 v{ACC+r}, v{ACC+r}, v{64+r}")
    a.label(L('x2'))
    a("s_lshl_b32 s31, s26, 11")
    a("s_add_u32 s31, s31, s29")
    a("s_add_u32 s31, s31, 8192")
    a("v_lshlrev_b32 v8, 6, v10")
    a("v_lshl_add_u32 v8, v11, 3, v8")
    a("v_add_u32 v8, s31, v8")
    for k in range(4):
        a(f"v_cvt_pk_bf16_f32 v{64+2*k}, v{ACC+4*k}, v{ACC+4*k+1}")
        a(f"v_cvt_pk_bf16_f32 v{65+2*k}, v{ACC+4*k+2}, v{ACC+4*k+3}")
        a(f"ds_write_b64 v8, {vr(64+2*k,2)} offset:{16*k}")
    a("s_waitcnt lgkmcnt(0)")
    a("s_barrier")
    a("v_lshlrev_b32 v8, 1, v0")
    for i in range(8):
        a(f"ds_read_u16_d16 v{64+i}, v8 offset:{8192+512*i}")
        a(f"ds_read_u16_d16 v{72+i}, v8 offset:{8192+512*i+DB}")
    a("s_waitcnt vmcnt(0)")
    a("v_lshlrev_b32 v12, 16, v248")
    a("v_and_b32 v13, 0xffff0000, v248")
    a("v_lshlrev_b32 v3, 11, v0")
    a("s_add_u32 s30, s30, 1024")
    a("s_waitcnt lgkmcnt(0)")
    for i in range(8):
        a(f"v_lshlrev_b32 v14, 16, v{240+i}")
        a(f"v_and_b32 v15, 0xffff0000, v{240+i}")
        a("v_mul_f32 v14, v14, v12")
        a("v_mul_f32 v15, v15, v13")
        a("v_cvt_pk_bf16_f32 v14, 0, v14")
        a("v_cvt_pk_bf16_f32 v15, 0, v15")
        a(f"v_lshlrev_b32 v{64+i}, 16, v{64+i}")
        a(f"v_lshlrev_b32 v{72+i}, 16, v{72+i}")
        a(f"v_add_f32 v14, v14, v{64+i}")
        a(f"v_add_f32 v15, v15, v{72+i}")
        a(f"v_cvt_pk_bf16_f32 v{64+i}, v14, v15")
        a(f"s_add_u32 s31, s30, {i*524288}")
        a(f"buffer_store_dword v{64+i}, v3, s[76:79], s31 offen")

def gen_tail(a, name="tail_kernel"):
    import oproj
    kernel_header(a, name)
    a("s_cmp_ge_u32 s2, 512")
    a("s_cbranch_scc1 " + name + "_done")
    a("s_cmp_lt_u32 s2, 256")
    a("s_cbranch_scc1 " + name + "_ssm")
    a("s_sub_u32 s2, s2, 256")
    oproj.gen_oproj_body(a, name + "_op")
    a("s_branch " + name + "_done")
    a.label(name + "_ssm")
    a("s_mov_b32 s3, s2")
    gen_ssm_body(a, name + "_b")
    a.label(name + "_done")
    a("s_endpgm")
    return kernel_desc(name, 256, 256)

def build(path):
    import gemm1, attn
    a = Asm()
    a.raw("; @launch kernel=qkv_kernel grid=(256,1,1) block=(512,1,1) lds=163840")
    a.raw("; @launch kernel=attn_kernel grid=(256,1,1) block=(512,1,1) lds=163840")
    a.raw("; @launch kernel=tail_kernel grid=(512,1,1) block=(256,1,1) lds=73728")
    a.raw('.amdgcn_target "amdgcn-amd-amdhsa--gfx950"')
    a.raw(".text")
    d1 = gemm1.gen_gemm1(a)
    d2 = attn.gen_attn(a)
    d3 = gen_tail(a)
    a.raw('.section .rodata,"a"')
    a.raw(d1); a.raw(d2); a.raw(d3)
    open(path, "w").write(a.text())
if __name__ == "__main__":
    build("g4.s")
```

```python
from common import *

O_ = 16
S_ = [80, 112]
P_ = 144
KF = 160
VF = 184
KA = 13
VD = 12
M_ = 2
ONES = 4
MX = 3
MX1 = 8
LA = 32
T_ = 144
NEG_INF = 0xff800000
SPARE = 131072
OPT = dict(prio=1, thr=0x42800000, barx=14, vsum=1, wpair=1, dstride=2)
RING = 6

def gen_attn(a, name="attn_kernel"):
    kernel_header(a, name)
    a("s_cmp_ge_u32 s2, 256")
    a("s_cbranch_scc1 " + name + "_done")
    a("s_load_dwordx2 s[46:47], s[0:1], 136")
    a("s_load_dwordx2 s[48:49], s[0:1], 40")
    a("v_and_b32 v1, 63, v0")
    a("v_lshrrev_b32 v14, 6, v0")
    a("s_nop 0")
    a("v_readfirstlane_b32 s24, v14")
    a("s_lshr_b32 s25, s24, 2")
    a("s_and_b32 s26, s24, 3")
    a("s_and_b32 s27, s2, 7")
    a("s_lshl_b32 s27, s27, 2")
    a("s_lshr_b32 s28, s2, 3")
    a("s_and_b32 s28, s28, 3")
    a("s_add_u32 s27, s27, s28")
    a("s_lshr_b32 s28, s2, 5")
    a("s_lshl_b32 s29, s27, 19")
    a("s_lshl_b32 s30, s25, 16")
    a(f"v_lshlrev_b32 v{VD}, 4, v1")
    a(f"v_add_u32 v{KA}, s30, v{VD}")
    a("s_lshl_b32 s32, s25, 14")
    a("s_lshl_b32 s33, s26, 12")
    a("s_add_u32 s32, s32, s33")
    a("s_add_u32 s32, s32, s29")
    a(f"s_add_u32 s33, s32, {WS_VT}")
    a(f"s_add_u32 s32, s32, {WS_K}")
    a("s_lshl_b32 s34, s26, 12")
    a("s_add_u32 s34, s34, s30")
    a("s_add_u32 s35, s34, 32768")
    a("s_sub_u32 s37, 15, s28")
    a("s_add_u32 s58, s37, 1")
    a("s_waitcnt lgkmcnt(0)")
    srd(a, 16, 46, WS_BYTES)

    def dma(kind, soff, buf):
        base = "s34" if kind == "k" else "s35"
        return [[f"s_add_u32 m0, {base}, {buf*16384}", "s_nop 0",
                 f"buffer_load_dwordx4 v{VD}, s[16:19], {soff} offen lds"]] + [
                [f"buffer_load_dwordx4 v{VD}, s[16:19], {soff} offen offset:{q*1024} lds"] for q in range(1, 4)]
    def emit_dma(kind, soff, buf):
        for g in dma(kind, soff, buf):
            for op in g: a(op)

    emit_dma("k", "s32", 0)
    def qdma(tsg):
        a(f"s_lshl_b32 s39, {tsg}, 15")
        a("s_lshl_b32 s44, s24, 12")
        a("s_add_u32 s39, s39, s44")
        a("s_add_u32 s39, s39, s29")
        a(f"s_add_u32 s39, s39, {WS_Q}")
        a(f"s_add_u32 m0, s44, {SPARE}")
        a("s_nop 0")
        for q in range(4):
            a(f"buffer_load_dwordx4 v{VD}, s[16:19], s39 offen offset:{q*1024} lds")
    qdma("s37")
    srd(a, 20, 48, 4194304)
    a("s_lshl_b32 s59, s2, 3")
    a("s_add_u32 s59, s59, s24")
    a("s_and_b32 s43, s59, 255")
    a("s_lshr_b32 s59, s59, 8")
    a("s_lshl_b32 s44, s43, 14")
    a("s_lshl_b32 s50, s59, 7")
    a("s_add_u32 s44, s44, s50")
    a("v_lshrrev_b32 v14, 3, v1")
    a("v_and_b32 v15, 7, v1")
    a("v_lshlrev_b32 v15, 4, v15")
    a("v_lshl_add_u32 v14, v14, 10, v15")
    a("s_add_u32 m0, s35, 16384")
    a("s_add_u32 s50, s44, 7168")
    a("buffer_load_dwordx4 v14, s[20:23], s44 offen lds")
    a("buffer_load_dwordx4 v14, s[20:23], s50 offen offset:1024 lds")
    a("s_lshl_b32 s59, s59, 19")
    a("s_lshl_b32 s43, s43, 10")
    a("s_add_u32 s59, s59, s43")
    a(f"s_add_u32 s59, s59, {WS_WOT}")
    if OPT['prio']:
        a("s_cmp_eq_u32 s25, 0")
        a(f"s_cbranch_scc1 {name}_np")
        a("s_setprio 1")
        a.label(name + "_np")
    a("v_and_b32 v10, 31, v1")
    a("v_lshrrev_b32 v11, 5, v1")
    a("s_mov_b32 s41, 0x3E0293EE")
    a(f"s_mov_b32 s42, 0x{OPT['thr']:08x}")
    for i in range(4): a(f"v_mov_b32 v{ONES+i}, {0 if OPT['vsum'] else 0x3f803f80}")
    a("s_lshl_b32 s43, s26, 5")
    a("s_lshl_b32 s44, s25, 6")
    a("s_sub_i32 s43, s43, s44")
    a("v_add_u32 v9, s43, v10")
    a("v_lshlrev_b32 v14, 2, v11")
    a("v_sub_u32 v9, v9, v14")
    for r in range(64): a(f"v_mov_b32 v{O_+r}, 0")
    a(f"v_mov_b32 v{M_}, 0xf149f2ca")
    if not OPT['vsum']:
        for r in range(16): a(f"v_accvgpr_write_b32 a{LA+r}, 0")
    a("s_mov_b32 s45, 0")
    a("s_lshl_b32 s51, s26, 13")
    a(f"s_add_u32 s51, s51, {SPARE}")
    a("s_sub_u32 s51, s51, s30")
    a("s_waitcnt vmcnt(0)")
    a("s_barrier")
    a(f"v_add_u32 v14, s51, v{KA}")
    for t in range(8):
        a(f"ds_read_b128 {ar(4*t,4)}, v14 offset:{1024*t}")
    a("s_add_u32 s38, s32, 32768")
    emit_dma("k", "s38", 1)
    emit_dma("v", "s33", 0)

    def kread(i, buf):
        a(f"ds_read_b128 {vr(KF+4*(i%RING),4)}, v{KA} offset:{buf*16384+i*1024}")
    def vread(i, buf):
        a(f"ds_read_b128 {vr(VF+4*(i%RING),4)}, v{KA} offset:{32768+buf*16384+i*1024}")

    def R_ops(S):
        ops = []
        for g0 in range(0, 32, 4):
            rs = [S + g0 + i for i in range(4)]
            if g0 == 0:
                ops.append(f"v_max_f32 v{MX}, v{rs[0]}, v{rs[1]}")
                ops.append(f"v_max_f32 v{MX1}, v{rs[2]}, v{rs[3]}")
            else:
                ops.append(f"v_max3_f32 v{MX}, v{rs[0]}, v{rs[1]}, v{MX}")
                ops.append(f"v_max3_f32 v{MX1}, v{rs[2]}, v{rs[3]}, v{MX1}")
        ops.append(f"v_max_f32 v{MX}, v{MX}, v{MX1}")
        ops.append(f"v_mov_b32 v{MX1}, v{MX}")
        ops.append("s_nop 1")
        ops.append(f"v_permlane32_swap_b32 v{MX}, v{MX1}")
        ops.append(f"v_max_f32 v{MX}, v{MX}, v{MX1}")
        ops.append(f"v_mul_f32 v{MX}, s41, v{MX}")
        ops.append(f"v_add_f32 v{MX1}, s42, v{M_}")
        ops.append(f"v_cmp_gt_f32 vcc, v{MX}, v{MX1}")
        return ops
    def E_ops(S):
        out = []
        pend = []
        for g0 in range(0, 32, 4):
            rs = [S + g0 + i for i in range(4)]
            out += [f"v_fma_f32 v{r}, v{r}, s41, -v{M_}" for r in rs] + pend
            out += [f"v_exp_f32 v{r}, v{r}" for r in rs]
            pend = [f"v_cvt_pk_bf16_f32 v{P_+g0//2}, v{rs[0]}, v{rs[1]}", f"v_cvt_pk_bf16_f32 v{P_+g0//2+1}, v{rs[2]}, v{rs[3]}"]
            if OPT['vsum']:
                pend += [f"v_add_f32 v{ONES+i}, v{ONES+i}, v{r}" for i, r in enumerate(rs)]
        out += ["s_nop 0"] + pend
        return out
    def mask_block(S):
        a(f"v_mov_b32 v14, 0x{NEG_INF:08x}")
        for g0 in range(0, 32, 8):
            for i in range(8):
                e = g0 + i; kt, r = e // 16, e % 16
                cst = (r & 3) + 8 * (r >> 2) + 32 * kt
                a(f"v_cmp_gt_i32 s[{60+2*i}:{61+2*i}], {cst}, v9")
            a("s_nop 1")
            for i in range(8):
                e = g0 + i
                a(f"v_cndmask_b32 v{S+e}, v{S+e}, v14, s[{60+2*i}:{61+2*i}]")
    def rescale(tag):
        lab = f"{name}_nors{tag}"
        a(f"s_cbranch_vccz {lab}")
        a("s_nop 7")
        a("s_nop 7")
        a(f"v_max_f32 v{MX}, v{MX}, v{M_}")
        a(f"v_sub_f32 v{MX1}, v{M_}, v{MX}")
        a(f"v_exp_f32 v{MX1}, v{MX1}")
        a(f"v_mov_b32 v{M_}, v{MX}")
        for r in range(64): a(f"v_mul_f32 v{O_+r}, v{O_+r}, v{MX1}")
        if OPT['vsum']:
            for i in range(4): a(f"v_mul_f32 v{ONES+i}, v{ONES+i}, v{MX1}")
        else:
            a(f"v_accvgpr_read_b32 v14, a{LA}")
            a("s_nop 0")
            a(f"v_mul_f32 v14, v14, v{MX1}")
            a("s_nop 0")
            for r in range(16): a(f"v_accvgpr_write_b32 a{LA+r}, v14")
        a("s_nop 1")
        a.label(lab)
    def nidx(dst, j):
        a(f"s_cmp_gt_u32 {j}, s37")
        a(f"s_cselect_b32 {dst}, s58, 0")
        a(f"s_sub_u32 {dst}, {j}, {dst}")
        a(f"s_lshl_b32 {dst}, {dst}, 15")
    def qk_mfma(i, Sd):
        kt, t = i // 8, i % 8
        acc = vr(Sd + 16 * kt, 16)
        a(f"v_mfma_f32_32x32x16_bf16 {acc}, {vr(KF+4*(i%RING),4)}, {ar(4*t,4)}, {'0' if t == 0 else acc}")
    def pv_mfma(i):
        s, db = i // 4, i % 4
        acc = vr(O_ + 16 * db, 16)
        a(f"v_mfma_f32_32x32x16_bf16 {acc}, {vr(VF+4*(i%RING),4)}, {vr(P_+4*s,4)}, {acc}")
    def sum_mfma(s):
        a(f"v_mfma_f32_32x32x16_bf16 {ar(LA,16)}, {vr(ONES,4)}, {vr(P_+4*s,4)}, {ar(LA,16)}")

    KPRE = 5
    for i in range(KPRE): kread(i, 0)
    for i in range(16):
        if i + KPRE < 16: kread(i + KPRE, 0)
        a(f"s_waitcnt lgkmcnt({min(KPRE, 15 - i)})")
        qk_mfma(i, S_[0])
    a("v_lshrrev_b32 v14, 5, v1")
    a("v_lshlrev_b32 v14, 2, v14")
    a("v_bfe_u32 v15, v1, 2, 2")
    a("v_add_u32 v14, v14, v15")
    a("v_lshlrev_b32 v14, 7, v14")
    a("v_bfe_u32 v15, v1, 4, 1")
    a("v_lshl_add_u32 v14, v15, 5, v14")
    a("v_and_b32 v15, 3, v1")
    a("v_lshl_add_u32 v14, v15, 3, v14")
    a("s_add_u32 s43, s35, 16384")
    a("v_add_u32 v14, s43, v14")
    for mb in range(2):
        a(f"ds_read_b64_tr_b16 {vr(VF+4*mb,2)}, v14 offset:{mb*64}")
        a(f"ds_read_b64_tr_b16 {vr(VF+4*mb+2,2)}, v14 offset:{mb*64+1024}")
    a("s_add_u32 s43, s59, 262144")
    a("s_waitcnt lgkmcnt(0)")
    a(f"buffer_store_dwordx4 {vr(VF,4)}, v{VD}, s[16:19], s59 offen sc0 sc1")
    a(f"buffer_store_dwordx4 {vr(VF+4,4)}, v{VD}, s[16:19], s43 offen sc0 sc1")
    for op in R_ops(S_[0]): a(op)
    a("s_add_u32 s38, s32, 65536")
    a("s_add_u32 s39, s33, 32768")
    a("s_waitcnt vmcnt(2)")
    a("s_barrier")
    qdma("s28")
    a("s_add_u32 s39, s33, 32768")
    for i in range(KPRE): kread(i, 1)

    def emit_iter(p, valu, with_qk, tag):
        slots = [("qk", i) for i in range(16)] if with_qk else []
        for s in range(4):
            slots += [("pv", 4 * s + db) for db in range(4)] + ([] if OPT['vsum'] else [("sum", s)])
        wt = lambda op: 0 if callable(op) else (2 if op.startswith("v_exp") else (0.5 if op.startswith("s_nop") else 1))
        tot = sum(wt(o) for o in valu)
        vi = 0; acc_w = 0.0
        def emit_until(target):
            nonlocal vi, acc_w
            while vi < len(valu) and acc_w < target:
                op = valu[vi]; vi += 1
                if callable(op): op()
                else: a(op)
                acc_w += wt(op)
        out = [("k", i) for i in range(KPRE)] if with_qk else []
        def issue(kind, i, buf):
            (kread if kind == "k" else vread)(i, buf)
            out.append((kind + ("n" if (kind == "k" and buf == p and with_qk and nextk[0]) else ""), i))
        nextk = [False]
        def wait_for(key):
            idx = out.index(key)
            n_after = len(out) - 1 - idx
            a(f"s_waitcnt lgkmcnt({n_after})")
            del out[:idx + 1]
        nk, nv = (KPRE if with_qk else 16), 0
        if not with_qk:
            for i in range(RING - 1): issue("v", i, p)
            nv = RING - 1
            emit_until(1e9)
            a("s_nop 1")
        BARX = OPT['barx']
        dmaops = dma("v", "s39", 1 - p) + dma("k", "s38", p)
        post = []
        for si, (k, i) in enumerate(slots):
            if k == "qk":
                if nk < 16: issue("k", nk, 1 - p); nk += 1
                elif nv < RING - 1: issue("v", nv, p); nv += 1
                if ("k", i) in out:
                    j = i + 1 if (OPT.get('wpair') and ("k", i + 1) in out) else i
                    wait_for(("k", j))
                qk_mfma(i, S_[1 - p])
                ds = OPT.get('dstride', 2)
                if i % ds == ds - 1 and i // ds < 8:
                    for op in dmaops[i // ds]: a(op)
            elif k == "pv":
                if with_qk and i == BARX:
                    a("s_waitcnt vmcnt(0) lgkmcnt(0)")
                    out.clear()
                    a("s_barrier")
                    nextk[0] = True
                    for j in range(KPRE): issue("k", j, p)
                if nv < 16: issue("v", nv, p); nv += 1
                if ("v", i) in out:
                    j = i + 1 if (OPT.get('wpair') and ("v", i + 1) in out) else i
                    wait_for(("v", j))
                pv_mfma(i)
            else:
                sum_mfma(i)
            emit_until((tot) * (si + 1) / (len(slots) - 1.0) + 4)
        emit_until(1e9)

    def body(p):
        a.label(f"{name}_body{p}")
        rescale(f"b{p}")
        a("s_cmp_lg_u32 s45, s37")
        a(f"s_cbranch_scc1 {name}_nq{p}")
        a(f"v_add_u32 v14, s51, v{KA}")
        for t in range(8):
            a(f"ds_read_b128 {ar(4*t,4)}, v14 offset:{1024*t}")
        a("s_waitcnt lgkmcnt(0)")
        a.label(f"{name}_nq{p}")
        def book():
            a("s_add_u32 s43, s45, 2")
            nidx("s39", "s43")
            a("s_add_u32 s39, s39, s33")
            a("s_add_u32 s43, s45, 3")
            nidx("s38", "s43")
            a("s_add_u32 s38, s38, s32")
        def mask():
            a("s_add_u32 s43, s45, 1")
            a("s_cmp_eq_u32 s43, s37")
            a("s_cselect_b32 s43, 16, s43")
            a("s_cmp_lg_u32 s43, 16")
            a(f"s_cbranch_scc1 {name}_nm{p}")
            mask_block(S_[1 - p])
            a.label(f"{name}_nm{p}")
        E = E_ops(S_[p])
        emit_iter(p, E + [book, mask] + R_ops(S_[1 - p]), True, f"b{p}")
        a(f"s_mov_b32 s56, {p}")
        a("s_cmp_eq_u32 s45, s37")
        a(f"s_cbranch_scc1 {name}_merge")
        a.label(f"{name}_cont{p}")
        a("s_add_u32 s45, s45, 1")
        a("s_cmp_eq_u32 s45, 16")
        a(f"s_cbranch_scc1 {name}_tail{1-p}")
        if p == 1: a(f"s_branch {name}_body0")
    body(0)
    body(1)
    def tail(p):
        a.label(f"{name}_tail{p}")
        a("s_waitcnt lgkmcnt(0)")
        rescale(f"t{p}")
        emit_iter(p, E_ops(S_[p]), False, f"t{p}")
        a(f"s_mov_b32 s56, {p}")
        a("s_mov_b32 s37, s28")
        if p == 0: a(f"s_branch {name}_merge")
    tail(0)
    tail(1)
    a.label(name + "_merge")
    a("s_waitcnt lgkmcnt(0)")
    a("s_barrier")
    a("v_lshlrev_b32 v14, 4, v1")
    a("s_lshl_b32 s43, s24, 12")
    a(f"s_add_u32 s43, s43, {SPARE}")
    a("s_lshl_b32 s44, s56, 14")
    a("s_add_u32 s44, s44, s35")
    a("s_xor_b32 s57, s56, 1")
    a("s_lshl_b32 s57, s57, 14")
    a("s_add_u32 s57, s57, s34")
    a(f"v_add_u32 v{T_+10}, s43, v14")
    a(f"v_add_u32 v{T_+11}, s44, v14")
    a(f"v_add_u32 v{T_+12}, s57, v14")
    a(f"v_xor_b32 v{T_+13}, 0x4000, v{T_+10}")
    a(f"v_xor_b32 v{T_+14}, 0x10000, v{T_+11}")
    a(f"v_xor_b32 v{T_+15}, 0x10000, v{T_+12}")
    a("s_nop 7")
    if OPT['vsum']:
        a(f"v_add_f32 v{ONES}, v{ONES}, v{ONES+1}")
        a(f"v_add_f32 v{ONES+2}, v{ONES+2}, v{ONES+3}")
        a(f"v_add_f32 v{ONES}, v{ONES}, v{ONES+2}")
        a(f"v_mov_b32 v{ONES+1}, v{ONES}")
        a("s_nop 1")
        a(f"v_permlane32_swap_b32 v{ONES}, v{ONES+1}")
        a(f"v_add_f32 v{T_+3}, v{ONES}, v{ONES+1}")
    else:
        a(f"v_accvgpr_read_b32 v{T_+3}, a{LA}")
    a(f"v_mov_b32 v{T_+2}, v{M_}")
    a("s_cmp_eq_u32 s25, 0")
    a(f"s_cbranch_scc0 {name}_wr1")
    for k in range(4): a(f"ds_write_b128 v{T_+10}, {vr(O_+32+4*k,4)} offset:{1024*k}")
    for k in range(4): a(f"ds_write_b128 v{T_+11}, {vr(O_+48+4*k,4)} offset:{1024*k}")
    a(f"s_branch {name}_wrd")
    a.label(name + "_wr1")
    for k in range(4): a(f"ds_write_b128 v{T_+10}, {vr(O_+4*k,4)} offset:{1024*k}")
    for k in range(4): a(f"ds_write_b128 v{T_+11}, {vr(O_+16+4*k,4)} offset:{1024*k}")
    a("s_nop 1")
    for r in range(32): a(f"v_mov_b32 v{O_+r}, v{O_+32+r}")
    a.label(name + "_wrd")
    a(f"ds_write_b64 v{T_+12}, v[{T_+2}:{T_+3}]")
    a("s_waitcnt lgkmcnt(0)")
    a("s_barrier")
    a(f"ds_read_b64 v[{T_+4}:{T_+5}], v{T_+15}")
    for k in range(4): a(f"ds_read_b128 {vr(O_+32+4*k,4)}, v{T_+13} offset:{1024*k}")
    for k in range(4): a(f"ds_read_b128 {vr(O_+48+4*k,4)}, v{T_+14} offset:{1024*k}")
    a("s_waitcnt lgkmcnt(8)")
    a(f"v_max_f32 v{T_+6}, v{T_+2}, v{T_+4}")
    a(f"v_sub_f32 v{T_+7}, v{T_+2}, v{T_+6}")
    a(f"v_sub_f32 v{T_+8}, v{T_+4}, v{T_+6}")
    a(f"v_exp_f32 v{T_+7}, v{T_+7}")
    a(f"v_exp_f32 v{T_+8}, v{T_+8}")
    a("s_nop 0")
    a(f"v_mul_f32 v{T_+9}, v{T_+3}, v{T_+7}")
    a(f"v_fma_f32 v{T_+9}, v{T_+5}, v{T_+8}, v{T_+9}")
    a(f"v_rcp_f32 v{T_+9}, v{T_+9}")
    a("s_nop 0")
    a(f"v_mul_f32 v{T_+7}, v{T_+7}, v{T_+9}")
    a(f"v_mul_f32 v{T_+8}, v{T_+8}, v{T_+9}")
    for r in range(32): a(f"v_mul_f32 v{O_+r}, v{O_+r}, v{T_+7}")
    a("s_waitcnt lgkmcnt(0)")
    a("s_barrier")
    for r in range(32): a(f"v_fma_f32 v{O_+r}, v{O_+32+r}, v{T_+8}, v{O_+r}")
    for k in range(16): a(f"v_cvt_pk_bf16_f32 v{O_+32+k}, v{O_+2*k}, v{O_+2*k+1}")
    a("s_lshl_b32 s43, s37, 2")
    a("s_add_u32 s43, s43, s26")
    a("s_lshl_b32 s43, s43, 18")
    a("s_lshl_b32 s44, s27, 13")
    a("s_add_u32 s43, s43, s44")
    a("s_lshl_b32 s44, s25, 12")
    a("s_add_u32 s43, s43, s44")
    a(f"s_add_u32 s43, s43, {WS_CTX}")
    for k in range(4):
        a(f"buffer_store_dwordx4 {vr(O_+32+4*k,4)}, v{VD}, s[16:19], s43 offen offset:{1024*k} sc0 sc1")
    a("s_cmp_eq_u32 s45, 16")
    a(f"s_cbranch_scc1 {name}_done")
    a("s_nop 1")
    for r in range(64): a(f"v_mov_b32 v{O_+r}, 0")
    a(f"v_mov_b32 v{M_}, 0xf149f2ca")
    if OPT['vsum']:
        for i in range(4): a(f"v_mov_b32 v{ONES+i}, 0")
    else:
        for r in range(16): a(f"v_accvgpr_write_b32 a{LA+r}, 0")
    a(f"v_add_f32 v{MX1}, s42, v{M_}")
    a(f"v_cmp_gt_f32 vcc, v{MX}, v{MX1}")
    a("s_cmp_eq_u32 s56, 0")
    a(f"s_cbranch_scc1 {name}_cont0")
    a(f"s_branch {name}_cont1")
    a.label(name + "_done")
    a("s_endpgm")
    return kernel_desc(name, 256, 208)
```

```python
from common import *

DMAPOS=[1,3,5,7]
def gen_gemm1(a, name="qkv_kernel"):
    R, P = 8, 6
    ACC = [16, 32]
    FR = 48
    PK = [80, 88]
    kernel_header(a, name)
    a("s_cmp_ge_u32 s2, 256")
    a("s_cbranch_scc1 " + name + "_done")
    a("s_load_dwordx4 s[36:39], s[0:1], 0")
    a("s_load_dwordx4 s[40:43], s[0:1], 16")
    a("s_load_dwordx4 s[60:63], s[0:1], 32")
    a("s_load_dwordx2 s[46:47], s[0:1], 136")
    a("v_and_b32 v1, 63, v0")
    a("v_lshrrev_b32 v9, 6, v0")
    a("s_nop 0")
    a("v_readfirstlane_b32 s24, v9")
    a("s_and_b32 s25, s2, 7")
    a("s_lshl_b32 s25, s25, 2")
    a("s_lshr_b32 s26, s2, 3")
    a("s_and_b32 s26, s26, 3")
    a("s_add_u32 s25, s25, s26")
    a("s_lshr_b32 s26, s2, 5")
    a("s_cmp_lt_u32 s25, 11")
    a("s_cbranch_scc0 " + name + "_kv")
    a("s_mul_i32 s30, s25, 12")
    a("s_sub_i32 s27, s25, 7")
    a("s_max_i32 s27, s27, 0")
    a("s_sub_u32 s30, s30, s27")
    a("s_cmp_lt_u32 s25, 7")
    a("s_cselect_b32 s27, 12, 11")
    a("s_add_u32 s31, s30, s27")
    a("s_waitcnt lgkmcnt(0)")
    srd(a, 8, 36, 2097152)
    srd(a, 12, 40, 4194304)
    srd(a, 20, 40, 4194304)
    a(f"s_mov_b32 s29, {WS_Q}")
    a("s_sub_u32 s57, s25, 7")
    a("s_branch " + name + "_go")
    a.label(name + "_kv")
    a("s_sub_u32 s25, s25, 11")
    a("s_mul_i32 s30, s25, 12")
    a("s_min_u32 s27, s25, 4")
    a("s_add_u32 s30, s30, s27")
    a("s_cmp_lt_u32 s25, 4")
    a("s_cselect_b32 s27, 13, 12")
    a("s_add_u32 s31, s30, s27")
    a("s_waitcnt lgkmcnt(0)")
    srd(a, 8, 38, 2097152)
    srd(a, 12, 42, 4194304)
    srd(a, 20, 60, 4194304)
    a(f"s_mov_b32 s29, {WS_K}")
    a("s_mov_b32 s57, -1")
    a.label(name + "_go")
    srd(a, 16, 46, WS_BYTES)
    a("s_sub_u32 s27, s31, s30")
    a("s_lshr_b32 s64, s27, 1")
    a("s_add_u32 s65, s27, 1")
    a("s_lshr_b32 s65, s65, 1")
    a("s_sub_u32 s67, s31, 2")
    a("s_sub_u32 s69, s31, 1")
    a("s_bitcmp1_b32 s30, 0")
    a("s_cselect_b32 s67, s67, s30")
    a("s_cselect_b32 s68, -2, 2")
    a("s_cselect_b32 s69, s30, s69")
    a("s_mov_b32 s66, 0")
    a("s_mov_b32 s30, s67")
    a("s_lshl_b32 s32, s26, 8")
    a("s_lshl_b32 s27, s24, 5")
    a("s_add_u32 s32, s32, s27")
    a("v_and_b32 v10, 31, v1")
    a("v_lshrrev_b32 v11, 5, v1")
    a("v_lshrrev_b32 v12, 3, v1")
    a("s_lshl_b32 s27, s24, 5")
    a("v_add_u32 v12, s27, v12")
    a("v_lshlrev_b32 v12, 13, v12")
    a("v_and_b32 v13, 7, v1")
    a("v_bfe_u32 v14, v1, 4, 1")
    a("v_lshlrev_b32 v14, 2, v14")
    a("v_xor_b32 v13, v13, v14")
    a("v_lshl_add_u32 v4, v13, 4, v12")
    a("v_lshrrev_b32 v12, 3, v1")
    a("v_add_u32 v12, s32, v12")
    a("v_lshlrev_b32 v12, 10, v12")
    a("v_and_b32 v13, 7, v1")
    a("v_lshrrev_b32 v14, 4, v1")
    a("v_xor_b32 v13, v13, v14")
    a("v_lshl_add_u32 v7, v13, 4, v12")
    a("v_xor_b32 v15, 64, v7")
    a("v_bfe_u32 v12, v10, 1, 3")
    a("v_xor_b32 v12, v12, v11")
    a("v_lshlrev_b32 v12, 4, v12")
    a("v_lshl_add_u32 v12, v10, 7, v12")
    a("s_mul_i32 s27, s24, 12288")
    a("s_add_u32 s27, s27, 65536")
    a("v_add_u32 v96, s27, v12")
    a("v_xor_b32 v97, 32, v96")
    a("v_xor_b32 v98, 64, v96")
    a("v_xor_b32 v99, 96, v96")
    a("s_mov_b32 s52, s27")
    a("s_lshl_b32 s34, s24, 12")
    a("s_mov_b32 s53, 0")

    def dma_w_setup_ops():
        ops = []
        class _A:
            def __call__(self, x): ops.append(x)
        _dma_w_setup(_A())
        return ops
    def dma_w_setup():
        _dma_w_setup(a)
    def _dma_w_setup(a):
        a("s_lshr_b32 s28, s53, 1")
        a("s_mul_i32 s27, s28, s68")
        a("s_add_u32 s27, s27, s67")
        a("s_cmp_ge_u32 s28, s64")
        a("s_cselect_b32 s27, s69, s27")
        a("s_cmp_ge_u32 s27, 128")
        a("s_cselect_b32 s12, s20, s12")
        a("s_cselect_b32 s13, s21, s13")
        a("s_and_b32 s27, s27, 127")
        a("s_lshl_b32 s54, s27, 6")
        a("s_and_b32 s27, s53, 1")
        a("s_lshl_b32 s27, s27, 21")
        a("s_add_u32 s54, s54, s27")
        a("s_and_b32 s27, s53, 3")
        a("s_lshl_b32 s27, s27, 15")
        a("s_add_u32 s55, s27, s34")
        a("s_add_u32 s53, s53, 1")
    def dma_w(q):
        return [f"s_add_u32 m0, s55, {q*1024}",
                f"s_add_u32 s35, s54, {q*65536}",
                "buffer_load_dwordx4 v4, s[12:15], s35 offen lds"]
    def dma_x(p):
        reg = p % 3
        for q in range(4):
            a(f"s_add_u32 m0, s52, {reg*4096+q*1024}")
            a(f"s_mov_b32 s35, {q*8192 + p*128}")
            a(f"buffer_load_dwordx4 {'v7' if q%2==0 else 'v15'}, s[8:11], s35 offen lds")
    for st in range(2):
        dma_w_setup()
        for q in range(4):
            for op in dma_w(q): a(op)
        dma_x(st)
    dma_x(2)
    a("s_lshl_b32 s27, s32, 8")
    a("v_lshlrev_b32 v5, 4, v1")
    a("v_add_u32 v5, s27, v5")
    a("v_add_u32 v6, 0x1000, v5")
    a("v_lshrrev_b32 v12, 5, v1")
    a("v_lshlrev_b32 v12, 3, v12")
    a("v_bfe_u32 v13, v1, 2, 2")
    a("v_add_u32 v12, v12, v13")
    a("v_lshlrev_b32 v12, 7, v12")
    a("v_bfe_u32 v13, v1, 3, 1")
    a("v_lshl_add_u32 v12, v13, 6, v12")
    a("v_bfe_u32 v13, v1, 4, 1")
    a("v_lshl_add_u32 v12, v13, 5, v12")
    a("v_and_b32 v13, 3, v1")
    a("v_lshl_add_u32 v2, v13, 3, v12")
    a("v_xor_b32 v3, 64, v2")
    a("v_mov_b32 v8, 0")
    a("v_add_u32 v103, 0x400, v5")
    a("s_mov_b32 s33, 0x10000000")
    def epi(acc, pk, voffs, soff):
        ops = []
        for g in range(2):
            for i in range(4):
                ops.append(f"v_cvt_pk_bf16_f32 v{pk+4*g+i}, v{acc+8*g+2*i}, v{acc+8*g+2*i+1}")
            ops.append(f"buffer_store_dwordx4 {vr(pk+4*g,4)}, {voffs[g]}, s[16:19], {soff} offen sc0 sc1")
        return ops

    def seq(full):
        s = []
        for stg in range(2):
            for nb in ((0, 1) if full else (0,)):
                for tt in range(16):
                    s.append((stg, nb, stg * 16 + tt))
        return s
    def rd(fr, slotidx, nextchunk=False):
        stg, nb, t = fr
        slot = FR + 4 * (slotidx % R)
        base = ("v2" if nb == 0 else "v3") if not nextchunk else ("v100" if nb == 0 else "v101")
        off = stg * 32768 + (t % 16) * 2048
        a(f"ds_read_b64_tr_b16 {vr(slot,2)}, {base} offset:{off}")
        a(f"ds_read_b64_tr_b16 {vr(slot+2,2)}, {base} offset:{off+512}")

    def offs(isV):
        for nb, sg in ((0, 50), (1, 51)):
            a(f"s_add_u32 s27, s49, {32*nb}")
            a(f"s_lshr_b32 s{sg}, s27, 7")
            a(f"s_lshl_b32 s{sg}, s{sg}, 19")
            a("s_and_b32 s27, s27, 127")
            a(f"s_lshl_b32 s27, s27, {5 if isV else 6}")
            a(f"s_add_u32 s{sg}, s{sg}, s27")
            a(f"s_add_u32 s{sg}, s{sg}, {WS_VT if isV else 's29'}")
        return ("v5", "v6") if isV else ("v5", "v103")
    def mfma(isV, nb, t, slot):
        acc = vr(ACC[nb], 16)
        cin = "0" if t == 0 else acc
        if isV: a(f"v_mfma_f32_32x32x16_bf16 {acc}, {ar(4*t,4)}, {vr(slot,4)}, {cin}")
        else: a(f"v_mfma_f32_32x32x16_bf16 {acc}, {vr(slot,4)}, {ar(4*t,4)}, {cin}")
    a("s_and_b32 s49, s30, 127")
    a("s_lshl_b32 s49, s49, 5")
    a("s_waitcnt vmcnt(16)")
    a("s_barrier")
    a("s_cmp_ge_u32 s30, 128")
    a("s_cbranch_scc1 " + name + "_firstV")
    def first(isV):
        voff = offs(isV)
        for p in range(8):
            a(f"s_waitcnt vmcnt({12 if p == 0 else 4*min(2, 7-p)})")
            if p == 4: a("s_barrier")
            for b in range(4):
                a(f"ds_read_b128 {ar(16*p+4*b,4)}, v{96+b} offset:{(p%3)*4096}")
            fr = [(p // 4, nb, 4 * p + b) for b in range(4) for nb in range(2)]
            for f in range(4): rd(fr[f], f)
            a("s_waitcnt lgkmcnt(8)")
            if p + 3 < 8: dma_x(p + 3)
            for f in range(8):
                if f + 4 < 8: rd(fr[f + 4], f + 4)
                a(f"s_waitcnt lgkmcnt({2*min(4, 7-f)})")
                mfma(isV, fr[f][1], fr[f][2], FR + 4 * f)
        a("s_barrier")
        for st in range(2):
            dma_w_setup()
            for q in range(4):
                for op in dma_w(q): a(op)
        for op in epi(ACC[0], PK[0], voff, "s50"): a(op)
        a(f"v_mov_b32 v8, {voff[1]}")
        a("s_mov_b32 s33, s51")
    first(False)
    a("s_branch " + name + "_firstd")
    a.label(name + "_firstV")
    first(True)
    a.label(name + "_firstd")
    dma_w_setup()
    for q in range(4):
        for op in dma_w(q): a(op)
    a("s_mov_b32 s27, 0x10000000")
    a("buffer_store_dwordx4 v[80:83], v5, s[16:19], s27 offen")
    a("buffer_store_dwordx4 v[80:83], v5, s[16:19], s27 offen")
    a("v_xor_b32 v2, 0x10000, v2")
    a("v_xor_b32 v3, 0x10000, v3")
    a("s_add_u32 s66, s66, 1")
    a("s_add_u32 s30, s30, s68")
    a("s_cmp_ge_u32 s66, s64")
    a("s_cselect_b32 s30, s69, s30")
    dma_w_setup()
    a("s_waitcnt vmcnt(12)")
    a("s_barrier")
    S = seq(True)
    for f in range(P): rd(S[f], f)
    a.label(name + "_loop")
    a("v_xor_b32 v100, 0x10000, v2")
    a("v_xor_b32 v101, 0x10000, v3")
    a("s_cmp_ge_u32 s30, 128")
    a("s_cbranch_scc1 " + name + "_bodyV")
    a("s_cmp_ge_u32 s66, s64")
    a("s_cbranch_scc1 " + name + "_bodyH")

    def body(isV, full, first_barrier_skipped=False):
        offops = ["s_and_b32 s49, s30, 127", "s_lshl_b32 s49, s49, 5"]
        for nb, sg in ((0, 50), (1, 51)):
            offops += [f"s_add_u32 s28, s49, {32*nb}", f"s_lshr_b32 s{sg}, s28, 7", f"s_lshl_b32 s{sg}, s{sg}, 19",
                       "s_and_b32 s28, s28, 127", f"s_lshl_b32 s28, s28, {5 if isV else 6}",
                       f"s_add_u32 s{sg}, s{sg}, s28", f"s_add_u32 s{sg}, s{sg}, {WS_VT if isV else 's29'}"]
        voff = ("v5", "v6") if isV else ("v5", "v103")
        S = seq(full)
        n = len(S)
        half = n // 2
        extra = {}
        def put(pos, ops):
            for i, op in enumerate(ops): extra.setdefault(pos + i // 2, []).append(op)
        for stg in range(2):
            st0 = stg * half
            for q in range(4):
                extra.setdefault(st0 + DMAPOS[q], []).extend(dma_w(q))
        put(14 if full else 13, offops)
        for stg in range(2):
            extra.setdefault(stg * half + (half - 3), []).extend(dma_w_setup_ops())
        put(8, epi(ACC[1], PK[1], ("v5", "v8"), "s33"))
        if full:
            put(48 + 5, epi(ACC[0], PK[0], voff, "s50"))
        for f in range(n):
            stg, nb, t = S[f]
            if f % half == 0:
                a("s_waitcnt vmcnt(8)")
                a("s_barrier")
            if f + P < n: rd(S[f + P], f + P)
            elif full: rd(S[f + P - n], f + P, nextchunk=True)
            rem = P if full else min(P, n - 1 - f)
            a(f"s_waitcnt lgkmcnt({2*rem})")
            slot = FR + 4 * (f % R)
            acc = vr(ACC[nb], 16)
            cin = "0" if t == 0 else acc
            if isV:
                a(f"v_mfma_f32_32x32x16_bf16 {acc}, {ar(4*t,4)}, {vr(slot,4)}, {cin}")
            else:
                a(f"v_mfma_f32_32x32x16_bf16 {acc}, {vr(slot,4)}, {ar(4*t,4)}, {cin}")
            for op in extra.get(f, []): a(op)
        if full:
            a(f"v_mov_b32 v8, {voff[1]}")
            a("s_mov_b32 s33, s51")
            a("s_branch " + name + "_next")
        else:
            a("s_nop 15")
            for op in epi(ACC[0], PK[0], voff, "s50"): a(op)
            a("s_branch " + name + "_done")
    body(False, True)
    a.label(name + "_bodyH")
    body(False, False)
    a.label(name + "_bodyV")
    body(True, True)
    a.label(name + "_next")
    a("v_mov_b32 v2, v100")
    a("v_mov_b32 v3, v101")
    a("s_add_u32 s66, s66, 1")
    a("s_add_u32 s30, s30, s68")
    a("s_cmp_ge_u32 s66, s64")
    a("s_cselect_b32 s30, s69, s30")
    a("s_cmp_lt_u32 s66, s65")
    a("s_cbranch_scc1 " + name + "_loop")
    a("s_nop 15")
    for op in epi(ACC[1], PK[1], ("v5", "v8"), "s33"): a(op)
    a.label(name + "_done")
    a("s_endpgm")
    return kernel_desc(name, 256, 128)

if __name__ == "__main__":
    a = Asm()
    a.raw("; @launch kernel=qkv_kernel grid=(256,1,1) block=(512,1,1) lds=163840")
    a.raw('.amdgcn_target "amdgcn-amd-amdhsa--gfx950"')
    a.raw(".text")
    d = gen_gemm1(a)
    a.raw('.section .rodata,"a"')
    a.raw(d)
    open("g1.s", "w").write(a.text())
```

```python
from common import *

def gen_oproj_body(a, name):
    D = 3
    ACC = 16
    FR = 80
    a("s_setprio 1")
    a("s_load_dwordx2 s[46:47], s[0:1], 136")
    a("s_load_dwordx2 s[44:45], s[0:1], 120")
    a("v_and_b32 v1, 63, v0")
    a("v_lshrrev_b32 v2, 6, v0")
    a("s_nop 0")
    a("v_readfirstlane_b32 s24, v2")
    a("s_and_b32 s25, s2, 7")
    a("s_lshr_b32 s26, s2, 3")
    a("s_lshl_b32 s25, s25, 2")
    a("s_lshr_b32 s27, s26, 3")
    a("s_add_u32 s25, s25, s27")
    a("s_and_b32 s26, s26, 7")
    a("v_lshlrev_b32 v3, 4, v1")
    a("s_lshl_b32 s27, s24, 15")
    a("s_lshl_b32 s30, s25, 19")
    a("s_add_u32 s30, s30, s27")
    a(f"s_add_u32 s30, s30, {WS_CTX}")
    a("s_add_u32 s31, s30, 262144")
    a("s_lshl_b32 s32, s26, 19")
    a("s_add_u32 s32, s32, s27")
    a(f"s_add_u32 s32, s32, {WS_WOT}")
    a("s_add_u32 s33, s32, 262144")
    a("s_waitcnt lgkmcnt(0)")
    srd(a, 16, 46, WS_BYTES)
    srd(a, 20, 44, 4194304)
    def loads(slot, sub):
        for i, sg in enumerate((32, 33, 30, 31)):
            a(f"buffer_load_dwordx4 {vr(FR+16*slot+4*i,4)}, v3, s[16:19], s{sg} offen offset:{1024*sub}")
    def adv():
        for sg in (30, 31, 32, 33): a(f"s_add_u32 s{sg}, s{sg}, {1024*D}")
    for st in range(D): loads(st, st)
    adv()
    for r in range(64): a(f"v_mov_b32 v{ACC+r}, 0")
    def step(st, ld):
        f = FR + 16 * st
        for mi in range(2):
            for qi in range(2):
                acc = vr(ACC + 16 * (2 * mi + qi), 16)
                a(f"v_mfma_f32_32x32x16_bf16 {acc}, {vr(f+4*mi,4)}, {vr(f+8+4*qi,4)}, {acc}")
        if ld: loads(st, st)
    a("s_mov_b32 s34, 0")
    a.label(name + "_loop")
    for st in range(D):
        a(f"s_waitcnt vmcnt({4*(D-1)})")
        step(st, True)
    adv()
    a("s_add_u32 s34, s34, 1")
    a("s_cmp_lt_u32 s34, 10")
    a(f"s_cbranch_scc1 {name}_loop")
    a("s_waitcnt vmcnt(8)")
    step(0, False)
    a("s_waitcnt vmcnt(4)")
    step(1, False)
    a("s_nop 15")
    a("s_and_b32 s27, s24, 3")
    a("s_lshl_b32 s27, s27, 14")
    a("v_add_u32 v4, s27, v3")
    a("s_cmp_lt_u32 s24, 4")
    a(f"s_cbranch_scc1 {name}_r1")
    for k in range(16): a(f"ds_write_b128 v4, {vr(ACC+4*k,4)} offset:{1024*k}")
    a.label(name + "_r1")
    a("s_waitcnt lgkmcnt(0) vmcnt(0)")
    a("s_barrier")
    a("s_cmp_lt_u32 s24, 4")
    a(f"s_cbranch_scc0 {name}_r2")
    for h in range(2):
        for k in range(8): a(f"ds_read_b128 {vr(80+4*k,4)}, v4 offset:{1024*(8*h+k)}")
        a("s_waitcnt lgkmcnt(0)")
        for r in range(32): a(f"v_add_f32 v{ACC+32*h+r}, v{ACC+32*h+r}, v{80+r}")
    for k in range(16): a(f"ds_write_b128 v4, {vr(ACC+4*k,4)} offset:{1024*k}")
    a.label(name + "_r2")
    a("s_waitcnt lgkmcnt(0)")
    a("s_barrier")
    a("v_and_b32 v5, 7, v0")
    a("v_lshrrev_b32 v6, 3, v0")
    a("v_lshrrev_b32 v7, 2, v5")
    a("v_and_b32 v8, 3, v5")
    a("v_lshlrev_b32 v7, 13, v7")
    a("v_lshl_add_u32 v7, v8, 10, v7")
    a("v_and_b32 v8, 31, v6")
    a("v_lshl_add_u32 v7, v8, 4, v7")
    a("v_lshrrev_b32 v8, 5, v6")
    a("v_lshl_add_u32 v7, v8, 12, v7")
    a("s_lshl_b32 s27, s25, 6")
    a("v_add_u32 v9, s27, v6")
    a("v_lshlrev_b32 v9, 11, v9")
    a("v_lshl_add_u32 v9, v5, 4, v9")
    a("s_lshl_b32 s27, s26, 7")
    base = 80
    for w in range(4):
        for hh in range(2):
            a(f"ds_read_b128 {vr(base+8*w+4*hh,4)}, v7 offset:{w*16384+hh*512}")
    a("s_waitcnt lgkmcnt(0)")
    for e in range(8):
        a(f"v_add_f32 v{base+e}, v{base+e}, v{base+8+e}")
        a(f"v_add_f32 v{base+16+e}, v{base+16+e}, v{base+24+e}")
    for e in range(8):
        a(f"v_add_f32 v{base+e}, v{base+e}, v{base+16+e}")
    for e in range(4):
        a(f"v_cvt_pk_bf16_f32 v{base+8+e}, v{base+2*e}, v{base+2*e+1}")
    a(f"buffer_store_dwordx4 {vr(base+8,4)}, v9, s[20:23], s27 offen")
```

```python
from common import *

DB = 36864
UOFF = 18432
UP = 4416
ROWP = 144
POFF = 10240

def gen_ssm_body(a, name, wg_sgpr="s3"):
    L = lambda s: f"{name}_{s}"
    a("s_setprio 3")
    a("s_load_dwordx4 s[36:39], s[0:1], 48")
    a("s_load_dwordx4 s[40:43], s[0:1], 64")
    a("s_load_dwordx4 s[44:47], s[0:1], 80")
    a("s_load_dwordx4 s[48:51], s[0:1], 96")
    a("s_load_dwordx4 s[52:55], s[0:1], 112")
    a("v_and_b32 v1, 63, v0")
    a("v_lshrrev_b32 v2, 6, v0")
    a("s_nop 0")
    a("v_readfirstlane_b32 s24, v2")
    a("s_lshr_b32 s25, s24, 2")
    a("s_and_b32 s26, s24, 3")
    a(f"s_and_b32 s27, {wg_sgpr}, 7")
    a("s_lshl_b32 s27, s27, 6")
    a(f"s_lshr_b32 s28, {wg_sgpr}, 3")
    a("s_lshl_b32 s28, s28, 1")
    a("s_add_u32 s27, s27, s28")
    a("s_add_u32 s28, s27, s25")
    a(f"s_mul_i32 s29, s25, {DB}")
    a("v_and_b32 v10, 31, v1")
    a("v_lshrrev_b32 v11, 5, v1")
    a("v_lshlrev_b32 v7, 1, v10")
    a("v_mov_b32 v4, 0")
    a("s_lshl_b32 s31, s28, 8")
    a("s_lshl_b32 s32, s26, 6")
    a("s_add_u32 s31, s31, s32")
    a("s_lshl_b32 s32, s28, 1")
    a("s_lshl_b32 s30, s27, 1")
    a("s_waitcnt lgkmcnt(0)")
    PS = (12, 16, 20, 56, 60, 64)
    for p, src in enumerate((38, 40, 42, 44, 46, 48)):
        srd(a, PS[p], src, 131072)
        a(f"buffer_load_ushort v{70+p}, v7, s[{PS[p]}:{PS[p]+3}], s31 offen")
    srd(a, 68, 50, 1024)
    a("buffer_load_ushort v5, v4, s[68:71], s32 offen")
    srd(a, 8, 36, 2097152)
    a("v_lshlrev_b32 v3, 10, v0")
    for i in range(4):
        a(f"s_add_u32 s31, s30, {i*524288}")
        a(f"buffer_load_dword v{64+i}, v3, s[8:11], s31 offen")
    srd(a, 72, 52, 1024)
    a("buffer_load_dword v6, v4, s[72:75], s30 offen")
    srd(a, 76, 54, 4194304)
    for r in range(4): a(f"v_mov_b32 v{12+r}, 0")
    a("v_lshlrev_b32 v8, 4, v0")
    a("v_add_u32 v9, 0x8000, v8")
    for i in range(4): a(f"ds_write_b128 v8, v[12:15] offset:{8192*i}")
    for i in range(5): a(f"ds_write_b128 v9, v[12:15] offset:{8192*i}")
    a("s_mov_b32 s33, 0x3FB8AA3B")
    a("s_mov_b32 s34, 0x3E22F983")
    a("v_cvt_f32_u32 v16, v10")
    a("v_lshlrev_b32 v17, 5, v10")
    a("v_cvt_f32_u32 v17, v17")
    ACC = 32
    for r in range(32): a(f"v_mov_b32 v{ACC+r}, 0")
    def cexp(re, im, zr, zi, T, tmp):
        a(f"v_mul_f32 v{tmp}, v{zr}, {T}")
        a(f"v_mul_f32 v{im}, v{zi}, {T}")
        a(f"v_exp_f32 v{tmp}, v{tmp}")
        a(f"v_fract_f32 v{im}, v{im}")
        a(f"v_cos_f32 v{re}, v{im}")
        a(f"v_sin_f32 v{im}, v{im}")
        a("s_nop 0")
        a(f"v_mul_f32 v{re}, v{re}, v{tmp}")
        a(f"v_mul_f32 v{im}, v{im}, v{tmp}")
    def cmul(dr, di_, ar_, ai, br, bi, neg_im=False):
        a(f"v_mul_f32 v{dr}, v{ar_}, v{br}")
        a(f"v_fma_f32 v{dr}, -v{ai}, v{bi}, v{dr}")
        if neg_im:
            a(f"v_mul_f32_e64 v{di_}, -v{ar_}, v{bi}")
            a(f"v_fma_f32 v{di_}, -v{ai}, v{br}, v{di_}")
        else:
            a(f"v_mul_f32 v{di_}, v{ar_}, v{bi}")
            a(f"v_fma_f32 v{di_}, v{ai}, v{br}, v{di_}")
    def split(hi, lo, x0, x1, t0, t1):
        a(f"v_cvt_pk_bf16_f32 v{hi}, v{x0}, v{x1}")
        a(f"v_lshlrev_b32 v{t0}, 16, v{hi}")
        a(f"v_and_b32 v{t1}, 0xffff0000, v{hi}")
        a(f"v_sub_f32 v{t0}, v{x0}, v{t0}")
        a(f"v_sub_f32 v{t1}, v{x1}, v{t1}")
        a(f"v_cvt_pk_bf16_f32 v{lo}, v{t0}, v{t1}")
    a("s_waitcnt vmcnt(5)")
    a("v_lshlrev_b32 v5, 16, v5")
    a("v_mul_f32 v5, s33, v5")
    a("v_exp_f32 v5, v5")
    for p in range(6): a(f"v_lshlrev_b32 v{70+p}, 16, v{70+p}")
    a("v_cvt_pk_bf16_f32 v5, 0, v5")
    a("v_mul_f32 v112, v5, v70")
    a("v_mul_f32 v113, v5, v71")
    a("v_mul_f32 v72, v5, v72")
    a("v_mul_f32 v73, v5, v73")
    a("v_mul_f32 v112, s33, v112")
    a("v_mul_f32 v113, s34, v113")
    cmul(114, 115, 74, 75, 72, 73)
    a("v_mov_b32 v19, 0x44800000")
    cexp(116, 117, 112, 113, "v19", 25)
    cmul(120, 121, 116, 117, 116, 117)
    a("v_mul_f32 v122, v114, v120")
    a("v_fma_f32 v122, -v115, v121, v122")
    a("s_waitcnt lgkmcnt(0)")
    a("s_barrier")
    a("s_lshl_b32 s31, s26, 10")
    a("s_add_u32 s31, s31, s29")
    a(f"s_add_u32 s31, s31, {POFF}")
    a("v_lshlrev_b32 v8, 5, v10")
    a("v_add_u32 v8, s31, v8")
    a("ds_write_b128 v8, v[112:115]")
    a("ds_write_b64 v8, v[116:117] offset:16")
    for off in (0x041F, 0x081F, 0x101F, 0x201F, 0x401F):
        a(f"ds_swizzle_b32 v123, v122 offset:{off}")
        a("s_waitcnt lgkmcnt(0)")
        a("v_add_f32 v122, v122, v123")
    a("v_mov_b32 v7, v122")
    a("v_lshlrev_b32 v8, 1, v0")
    a(f"v_add_u32 v9, {DB}, v8")
    a("s_waitcnt vmcnt(0)")
    a("s_setprio 0")
    for i in range(4):
        for phi in range(4):
            off = UOFF + phi * UP + (512 * i + 64 - phi) * 2
            a(f"ds_write_b16 v8, v{64+i} offset:{off}")
            a(f"ds_write_b16_d16_hi v9, v{64+i} offset:{off}")
    AF = lambda rt, c, h: 64 + ((rt * 2 + c) * 2 + h) * 4
    BF = lambda c, h: 96 + (c * 2 + h) * 4
    a("v_lshlrev_b32 v8, 8, v11")
    a("v_add_u32 v8, s31, v8")
    a("s_mov_b32 s35, 2")
    a("s_waitcnt lgkmcnt(0)")
    a.label(L('kg'))
    for jp in range(4):
        p0, p1 = 112, 118
        a(f"ds_read_b128 v[112:115], v8 offset:{64*jp}")
        a(f"ds_read_b64 v[116:117], v8 offset:{64*jp+16}")
        a(f"ds_read_b128 v[118:121], v8 offset:{64*jp+32}")
        a(f"ds_read_b64 v[122:123], v8 offset:{64*jp+48}")
        a("s_waitcnt lgkmcnt(0)")
        cexp(18, 19, p0, p0 + 1, "v17", 30)
        cexp(20, 21, p1, p1 + 1, "v17", 31)
        cmul(22, 23, 18, 19, p0 + 4, p0 + 5)
        cmul(24, 25, 20, 21, p1 + 4, p1 + 5)
        cexp(26, 27, p0, p0 + 1, "v16", 30)
        cexp(28, 29, p1, p1 + 1, "v16", 31)
        cmul(124, 125, p0 + 2, p0 + 3, 26, 27, neg_im=True)
        cmul(126, 127, p1 + 2, p1 + 3, 28, 29, neg_im=True)
        split(AF(0, 0, 0) + jp, AF(0, 0, 1) + jp, 18, 20, 30, 31)
        split(AF(0, 1, 0) + jp, AF(0, 1, 1) + jp, 19, 21, 14, 15)
        split(AF(1, 0, 0) + jp, AF(1, 0, 1) + jp, 22, 24, 30, 31)
        split(AF(1, 1, 0) + jp, AF(1, 1, 1) + jp, 23, 25, 14, 15)
        split(BF(0, 0) + jp, BF(0, 1) + jp, 124, 126, 30, 31)
        split(BF(1, 0) + jp, BF(1, 1) + jp, 125, 127, 14, 15)
    a("v_add_u32 v8, 512, v8")
    a("s_nop 0")
    for rt in range(2):
        acc = vr(ACC + 16 * rt, 16)
        for c in range(2):
            for (ha, hb) in ((1, 0), (0, 1), (0, 0)):
                a(f"v_mfma_f32_32x32x16_bf16 {acc}, {vr(AF(rt,c,ha),4)}, {vr(BF(c,hb),4)}, {acc}")
    a("s_sub_u32 s35, s35, 1")
    a("s_cmp_lg_u32 s35, 0")
    a(f"s_cbranch_scc1 {L('kg')}")
    a("s_barrier")
    a("v_lshrrev_b32 v8, 4, v10")
    a("v_add_u32 v8, v8, v10")
    a("v_mul_u32_u24 v9, 136, v11")
    a("v_add_u32 v8, v8, v9")
    a("s_and_b32 s31, s26, 1")
    a("s_mul_i32 s31, s31, 9216")
    a("s_add_u32 s31, s31, s29")
    a("v_lshl_add_u32 v8, v8, 2, s31")
    a("v_mov_b32 v9, s31")
    a("s_nop 7")
    def kf_write():
        for rt in range(2):
            for r in range(16):
                i = (r & 3) + 8 * (r >> 2) + 32 * rt
                a(f"ds_write_b32 v8, v{ACC+16*rt+r} offset:{i*136}")
        a(f"ds_write_b32 v9, v7 offset:{(2048+128)*4}")
    a("s_cmp_lt_u32 s26, 2")
    a(f"s_cbranch_scc1 {L('p1')}")
    kf_write()
    a.label(L('p1'))
    a("s_waitcnt lgkmcnt(0)")
    a("s_barrier")
    a("s_cmp_lt_u32 s26, 2")
    a(f"s_cbranch_scc0 {L('p2')}")
    for rt in range(2):
        for r in range(16):
            i = (r & 3) + 8 * (r >> 2) + 32 * rt
            a(f"ds_read_b32 v{64+16*rt+r}, v8 offset:{i*136}")
        if rt == 0: a("s_waitcnt lgkmcnt(8)")
    a(f"ds_read_b32 v96, v9 offset:{(2048+128)*4}")
    a("s_waitcnt lgkmcnt(0)")
    for r in range(32): a(f"v_add_f32 v{ACC+r}, v{ACC+r}, v{64+r}")
    a("v_add_f32 v7, v7, v96")
    kf_write()
    a.label(L('p2'))
    a("s_lshl_b32 s31, s26, 6")
    a("v_add_u32 v8, s31, v1")
    a("v_lshlrev_b32 v9, 3, v8")
    for e in range(8):
        a(f"v_add_u32 v{64+e}, {e}, v9")
        a(f"v_cvt_f32_u32 v{64+e}, v{64+e}")
        a(f"v_cvt_pk_bf16_f32 v{64+e}, 0, v{64+e}")
        a(f"v_cvt_u32_f32 v{64+e}, v{64+e}")
        a(f"v_lshrrev_b32 v80, 4, v{64+e}")
        a(f"v_add_u32 v{64+e}, v{64+e}, v80")
        a(f"v_lshl_add_u32 v{64+e}, v{64+e}, 2, s29")
    a("s_waitcnt lgkmcnt(0)")
    a("s_barrier")
    for e in range(8):
        a(f"ds_read_b32 v{80+e}, v{64+e} offset:9216")
        a(f"ds_read_b32 v{64+e}, v{64+e}")
        if e % 4 == 3:
            a("s_waitcnt lgkmcnt(0)")
            for e2 in range(e - 3, e + 1): a(f"v_add_f32 v{64+e2}, v{64+e2}, v{80+e2}")
    a("v_lshrrev_b32 v9, 2, v8")
    a("v_add_u32 v9, 63, v9")
    a(f"v_mul_u32_u24 v9, {ROWP}, v9")
    a("v_and_b32 v12, 3, v8")
    a("v_lshl_add_u32 v9, v12, 4, v9")
    a("v_add_u32 v9, s29, v9")
    a("s_barrier")
    for q in range(4):
        split(96 + q, 100 + q, 64 + 7 - 2 * q, 64 + 6 - 2 * q, 30, 31)
    a("ds_write_b128 v9, v[96:99]")
    a("ds_write_b128 v9, v[100:103] offset:64")
    for r in range(4): a(f"v_mov_b32 v{12+r}, 0")
    a("v_lshlrev_b32 v8, 4, v8")
    a("v_add_u32 v8, s29, v8")
    for i in range(2): a(f"ds_write_b128 v8, v[12:15] offset:{4096*i}")
    a("v_cmp_gt_u32 vcc, 55, v1")
    a("s_cmp_eq_u32 s26, 0")
    a("s_cselect_b64 s[80:81], vcc, 0")
    a("s_and_saveexec_b64 s[82:83], s[80:81]")
    a(f"s_cbranch_execz {L('z1')}")
    a("ds_write_b128 v8, v[12:15] offset:8192")
    a.label(L('z1'))
    a("s_mov_b64 exec, s[82:83]")
    a("v_add_u32 v8, 57, v10")
    a("v_and_b32 v9, 3, v8")
    a("v_lshrrev_b32 v8, 2, v8")
    a("v_lshlrev_b32 v12, 1, v11")
    a("v_sub_u32 v8, v8, v12")
    a("v_lshlrev_b32 v8, 3, v8")
    a(f"v_mul_u32_u24 v9, {UP}, v9")
    a("v_add_u32 v8, v8, v9")
    a(f"s_add_u32 s31, s29, {UOFF-32}")
    a("v_add_u32 v18, s31, v8")
    a(f"v_mul_u32_u24 v9, {ROWP}, v10")
    a("v_lshl_add_u32 v9, v11, 4, v9")
    a(f"s_add_u32 s31, s29, {62*ROWP}")
    a("v_add_u32 v19, s31, v9")
    a("s_mul_i32 s36, s26, 24")
    a("s_cmp_ge_u32 s26, 2")
    a("s_cselect_b32 s37, 32, 0")
    a("s_sub_u32 s36, s36, s37")
    a("s_cmp_eq_u32 s26, 1")
    a("s_cselect_b32 s35, 4, 12")
    a("s_cselect_b32 s38, 1, 0")
    a("s_waitcnt lgkmcnt(0)")
    a("s_barrier")
    a.label(L('cv'))
    a("s_lshl_b32 s31, s36, 6")
    a("v_add_u32 v8, s31, v18")
    a("s_sub_i32 s31, s37, s36")
    a(f"s_mul_i32 s31, s31, {ROWP}")
    a("v_add_u32 v9, s31, v19")
    for r in range(16): a(f"v_mov_b32 v{ACC+r}, 0")
    def rdset(b, dl):
        base = 64 + 24 * b
        for s in range(2):
            a(f"ds_read_b64 {vr(base+4*s,2)}, v8 offset:{32-32*s+64*dl}")
            a(f"ds_read_b64 {vr(base+2+4*s,2)}, v8 offset:{40-32*s+64*dl}")
            for h in range(2):
                a(f"ds_read_b128 {vr(base+8+8*s+4*h,4)}, v9 offset:{32*s+64*h+ROWP*(1-dl)}")
    def mm(b):
        base = 64 + 24 * b
        acc = vr(ACC, 16)
        for s in range(2):
            for h in range(2):
                a(f"v_mfma_f32_32x32x16_bf16 {acc}, {vr(base+4*s,4)}, {vr(base+8+8*s+4*h,4)}, {acc}")
    rdset(0, 0)
    a.label(L('c1'))
    rdset(1, 1)
    a("s_waitcnt lgkmcnt(8)")
    mm(0)
    a("v_add_u32 v8, 128, v8")
    a(f"v_subrev_u32 v9, {2*ROWP}, v9")
    rdset(0, 0)
    a("s_waitcnt lgkmcnt(8)")
    mm(1)
    a("s_sub_u32 s35, s35, 1")
    a("s_cmp_lg_u32 s35, 0")
    a(f"s_cbranch_scc1 {L('c1')}")
    a("s_waitcnt lgkmcnt(0)")
    a("s_nop 15")
    a("s_cmp_eq_u32 s38, 0")
    a(f"s_cbranch_scc1 {L('cd')}")
    for r in range(16): a(f"v_mov_b32 v{ACC+16+r}, v{ACC+r}")
    a("s_mov_b32 s38, 0")
    a("s_mov_b32 s36, 0")
    a("s_mov_b32 s37, 32")
    a("s_mov_b32 s35, 8")
    a(f"s_branch {L('cv')}")
    a.label(L('cd'))
    a("s_barrier")
    a("v_lshlrev_b32 v8, 4, v1")
    a("v_add_u32 v8, s29, v8")
    a("s_cmp_eq_u32 s26, 1")
    a(f"s_cbranch_scc0 {L('x1')}")
    for k in range(4): a(f"ds_write_b128 v8, {vr(ACC+16+4*k,4)} offset:{1024*k}")
    for k in range(4): a(f"ds_write_b128 v8, {vr(ACC+4*k,4)} offset:{4096+1024*k}")
    a.label(L('x1'))
    a("s_cmp_eq_u32 s26, 3")
    a(f"s_cbranch_scc0 {L('x3')}")
    for k in range(4): a(f"ds_write_b128 v8, {vr(ACC+4*k,4)} offset:{8192+1024*k}")
    a.label(L('x3'))
    a("s_waitcnt lgkmcnt(0)")
    a("s_barrier")
    a("s_and_b32 s31, s26, 1")
    a("s_cmp_eq_u32 s31, 1")
    a(f"s_cbranch_scc1 {L('xd')}")
    a("s_lshl_b32 s31, s26, 11")
    a("v_add_u32 v9, s31, v8")
    for k in range(4): a(f"ds_read_b128 {vr(64+4*k,4)}, v9 offset:{1024*k}")
    a("s_waitcnt lgkmcnt(0)")
    for r in range(16): a(f"v_add_f32 v{ACC+r}, v{ACC+r}, v{64+r}")
    a("s_cmp_eq_u32 s26, 0")
    a(f"s_cbranch_scc1 {L('x4')}")
    for k in range(4): a(f"ds_read_b128 {vr(64+4*k,4)}, v8 offset:{8192+1024*k}")
    a("s_waitcnt lgkmcnt(0)")
    for r in range(16): a(f"v_add_f32 v{ACC+r}, v{ACC+r}, v{64+r}")
    a.label(L('x4'))
    a("s_lshl_b32 s31, s26, 10")
    a("s_add_u32 s31, s31, s29")
    a("s_add_u32 s31, s31, 12288")
    a("v_lshlrev_b32 v8, 6, v10")
    a("v_lshl_add_u32 v8, v11, 3, v8")
    a("v_add_u32 v8, s31, v8")
    for k in range(4):
        a(f"v_cvt_pk_bf16_f32 v{64+2*k}, v{ACC+4*k}, v{ACC+4*k+1}")
        a(f"v_cvt_pk_bf16_f32 v{65+2*k}, v{ACC+4*k+2}, v{ACC+4*k+3}")
        a(f"ds_write_b64 v8, {vr(64+2*k,2)} offset:{16*k}")
    a.label(L('xd'))
    a("s_waitcnt lgkmcnt(0)")
    a("s_barrier")
    a("v_lshlrev_b32 v8, 1, v0")
    a(f"v_add_u32 v9, {DB}, v8")
    for i in range(4):
        a(f"ds_read_u16_d16 v{64+i}, v8 offset:{12288+1024*i}")
        a(f"ds_read_u16_d16 v{68+i}, v9 offset:{12288+1024*i}")
        a(f"ds_read_u16_d16 v{72+i}, v8 offset:{UOFF+128+1024*i}")
        a(f"ds_read_u16_d16 v{76+i}, v9 offset:{UOFF+128+1024*i}")
    a("v_lshlrev_b32 v12, 16, v6")
    a("v_and_b32 v13, 0xffff0000, v6")
    a("v_lshlrev_b32 v3, 11, v0")
    a("s_add_u32 s30, s30, 1024")
    a("s_waitcnt lgkmcnt(0)")
    for i in range(4):
        a(f"v_lshlrev_b32 v14, 16, v{72+i}")
        a(f"v_lshlrev_b32 v15, 16, v{76+i}")
        a("v_mul_f32 v14, v14, v12")
        a("v_mul_f32 v15, v15, v13")
        a("v_cvt_pk_bf16_f32 v14, 0, v14")
        a("v_cvt_pk_bf16_f32 v15, 0, v15")
        a(f"v_lshlrev_b32 v{64+i}, 16, v{64+i}")
        a(f"v_lshlrev_b32 v{68+i}, 16, v{68+i}")
        a(f"v_add_f32 v14, v14, v{64+i}")
        a(f"v_add_f32 v15, v15, v{68+i}")
        a(f"v_cvt_pk_bf16_f32 v{64+i}, v14, v15")
        a(f"s_add_u32 s31, s30, {i*1048576}")
        a(f"buffer_store_dword v{64+i}, v3, s[76:79], s31 offen")

def gen_tail(a, name="tail_kernel"):
    import oproj
    kernel_header(a, name)
    a("s_cmp_ge_u32 s2, 512")
    a("s_cbranch_scc1 " + name + "_done")
    a("s_cmp_lt_u32 s2, 256")
    a("s_cbranch_scc1 " + name + "_ssm")
    a("s_sub_u32 s2, s2, 256")
    oproj.gen_oproj_body(a, name + "_op")
    a("s_branch " + name + "_done")
    a.label(name + "_ssm")
    a("s_mov_b32 s3, s2")
    gen_ssm_body(a, name + "_b")
    a.label(name + "_done")
    a("s_endpgm")
    a.label("code_end")
    a("s_endpgm")
    return kernel_desc(name, 128, 128)

TAIL_LAUNCH = "; @launch kernel=tail_kernel grid=(512,1,1) block=(512,1,1) lds=73728"
def build(path):
    import gemm1, attn
    a = Asm()
    a.raw("; @launch kernel=qkv_kernel grid=(256,1,1) block=(512,1,1) lds=163840")
    a.raw("; @launch kernel=attn_kernel grid=(256,1,1) block=(512,1,1) lds=163840")
    a.raw(TAIL_LAUNCH)
    a.raw('.amdgcn_target "amdgcn-amd-amdhsa--gfx950"')
    a.raw(".text")
    d1 = gemm1.gen_gemm1(a)
    d2 = attn.gen_attn(a)
    d3 = gen_tail(a)
    a.raw('.section .rodata,"a"')
    a.raw(d1); a.raw(d2); a.raw(d3)
    open(path, "w").write(a.text())
if __name__ == "__main__":
    build("g4.s")
```

```python
from common import *

DMAPOS=[1,3,5,7]
PREFETCH_CODE=True
def gen_gemm1(a, name="qkv_kernel"):
    R, P = 8, 6
    ACC = [16, 32]
    FR = 48
    PK = [80, 88]
    kernel_header(a, name)
    a("s_cmp_ge_u32 s2, 256")
    a("s_cbranch_scc1 " + name + "_done")
    a("s_load_dwordx4 s[36:39], s[0:1], 0")
    a("s_load_dwordx4 s[40:43], s[0:1], 16")
    a("s_load_dwordx4 s[60:63], s[0:1], 32")
    a("s_load_dwordx2 s[46:47], s[0:1], 136")
    a("v_and_b32 v1, 63, v0")
    a("v_lshrrev_b32 v9, 6, v0")
    a("s_nop 0")
    a("v_readfirstlane_b32 s24, v9")
    if PREFETCH_CODE:
        a("s_cmp_ge_u32 s2, 32")
        a("s_cbranch_scc1 " + name + "_nopf")
        a("s_getpc_b64 s[70:71]")
        a.label(name + "_pc")
        a(f"s_sub_u32 s70, s70, {name}_pc-{name}")
        a("s_subb_u32 s71, s71, 0")
        a("s_lshr_b32 s27, s2, 3")
        a("s_lshl_b32 s27, s27, 3")
        a("s_add_u32 s27, s27, s24")
        a("s_lshl_b32 s27, s27, 11")
        a("v_lshlrev_b32 v110, 4, v1")
        a("v_add_u32 v110, s27, v110")
        a("v_add_u32 v111, 0x400, v110")
        a(f"s_mov_b32 s27, code_end-{name}-16")
        a("v_min_u32 v110, s27, v110")
        a("v_min_u32 v111, s27, v111")
        a("global_load_dwordx4 v[112:115], v110, s[70:71]")
        a("global_load_dwordx4 v[116:119], v111, s[70:71]")
        a.label(name + "_nopf")
    a("s_and_b32 s25, s2, 7")
    a("s_lshl_b32 s25, s25, 2")
    a("s_lshr_b32 s26, s2, 3")
    a("s_and_b32 s26, s26, 3")
    a("s_add_u32 s25, s25, s26")
    a("s_lshr_b32 s26, s2, 5")
    a("s_cmp_lt_u32 s25, 11")
    a("s_cbranch_scc0 " + name + "_kv")
    a("s_mul_i32 s30, s25, 12")
    a("s_sub_i32 s27, s25, 7")
    a("s_max_i32 s27, s27, 0")
    a("s_sub_u32 s30, s30, s27")
    a("s_cmp_lt_u32 s25, 7")
    a("s_cselect_b32 s27, 12, 11")
    a("s_add_u32 s31, s30, s27")
    a("s_waitcnt lgkmcnt(0)")
    srd(a, 8, 36, 2097152)
    srd(a, 12, 40, 4194304)
    srd(a, 20, 40, 4194304)
    a(f"s_mov_b32 s29, {WS_Q}")
    a("s_sub_u32 s57, s25, 7")
    a("s_branch " + name + "_go")
    a.label(name + "_kv")
    a("s_sub_u32 s25, s25, 11")
    a("s_mul_i32 s30, s25, 12")
    a("s_min_u32 s27, s25, 4")
    a("s_add_u32 s30, s30, s27")
    a("s_cmp_lt_u32 s25, 4")
    a("s_cselect_b32 s27, 13, 12")
    a("s_add_u32 s31, s30, s27")
    a("s_waitcnt lgkmcnt(0)")
    srd(a, 8, 38, 2097152)
    srd(a, 12, 42, 4194304)
    srd(a, 20, 60, 4194304)
    a(f"s_mov_b32 s29, {WS_K}")
    a("s_mov_b32 s57, -1")
    a.label(name + "_go")
    srd(a, 16, 46, WS_BYTES)
    a("s_sub_u32 s27, s31, s30")
    a("s_lshr_b32 s64, s27, 1")
    a("s_add_u32 s65, s27, 1")
    a("s_lshr_b32 s65, s65, 1")
    a("s_sub_u32 s67, s31, 2")
    a("s_sub_u32 s69, s31, 1")
    a("s_bitcmp1_b32 s30, 0")
    a("s_cselect_b32 s67, s67, s30")
    a("s_cselect_b32 s68, -2, 2")
    a("s_cselect_b32 s69, s30, s69")
    a("s_mov_b32 s66, 0")
    a("s_mov_b32 s30, s67")
    a("s_lshl_b32 s32, s26, 8")
    a("s_lshl_b32 s27, s24, 5")
    a("s_add_u32 s32, s32, s27")
    a("v_and_b32 v10, 31, v1")
    a("v_lshrrev_b32 v11, 5, v1")
    a("v_lshrrev_b32 v12, 3, v1")
    a("s_lshl_b32 s27, s24, 5")
    a("v_add_u32 v12, s27, v12")
    a("v_lshlrev_b32 v12, 13, v12")
    a("v_and_b32 v13, 7, v1")
    a("v_bfe_u32 v14, v1, 4, 1")
    a("v_lshlrev_b32 v14, 2, v14")
    a("v_xor_b32 v13, v13, v14")
    a("v_lshl_add_u32 v4, v13, 4, v12")
    a("v_lshrrev_b32 v12, 3, v1")
    a("v_add_u32 v12, s32, v12")
    a("v_lshlrev_b32 v12, 10, v12")
    a("v_and_b32 v13, 7, v1")
    a("v_lshrrev_b32 v14, 4, v1")
    a("v_xor_b32 v13, v13, v14")
    a("v_lshl_add_u32 v7, v13, 4, v12")
    a("v_xor_b32 v15, 64, v7")
    a("v_bfe_u32 v12, v10, 1, 3")
    a("v_xor_b32 v12, v12, v11")
    a("v_lshlrev_b32 v12, 4, v12")
    a("v_lshl_add_u32 v12, v10, 7, v12")
    a("s_mul_i32 s27, s24, 12288")
    a("s_add_u32 s27, s27, 65536")
    a("v_add_u32 v96, s27, v12")
    a("v_xor_b32 v97, 32, v96")
    a("v_xor_b32 v98, 64, v96")
    a("v_xor_b32 v99, 96, v96")
    a("s_mov_b32 s52, s27")
    a("s_lshl_b32 s34, s24, 12")
    a("s_mov_b32 s53, 0")

    def dma_w_setup_ops():
        ops = []
        class _A:
            def __call__(self, x): ops.append(x)
        _dma_w_setup(_A())
        return ops
    def dma_w_setup():
        _dma_w_setup(a)
    def _dma_w_setup(a):
        a("s_lshr_b32 s28, s53, 1")
        a("s_mul_i32 s27, s28, s68")
        a("s_add_u32 s27, s27, s67")
        a("s_cmp_ge_u32 s28, s64")
        a("s_cselect_b32 s27, s69, s27")
        a("s_cmp_ge_u32 s27, 128")
        a("s_cselect_b32 s12, s20, s12")
        a("s_cselect_b32 s13, s21, s13")
        a("s_and_b32 s27, s27, 127")
        a("s_lshl_b32 s54, s27, 6")
        a("s_and_b32 s27, s53, 1")
        a("s_lshl_b32 s27, s27, 21")
        a("s_add_u32 s54, s54, s27")
        a("s_and_b32 s27, s53, 3")
        a("s_lshl_b32 s27, s27, 15")
        a("s_add_u32 s55, s27, s34")
        a("s_add_u32 s53, s53, 1")
    def dma_w(q):
        return [f"s_add_u32 m0, s55, {q*1024}",
                f"s_add_u32 s35, s54, {q*65536}",
                "buffer_load_dwordx4 v4, s[12:15], s35 offen lds"]
    def dma_x(p):
        reg = p % 3
        for q in range(4):
            a(f"s_add_u32 m0, s52, {reg*4096+q*1024}")
            a(f"s_mov_b32 s35, {q*8192 + p*128}")
            a(f"buffer_load_dwordx4 {'v7' if q%2==0 else 'v15'}, s[8:11], s35 offen lds")
    for st in range(2):
        dma_w_setup()
        for q in range(4):
            for op in dma_w(q): a(op)
        dma_x(st)
    dma_x(2)
    a("s_lshl_b32 s27, s32, 8")
    a("v_lshlrev_b32 v5, 4, v1")
    a("v_add_u32 v5, s27, v5")
    a("v_add_u32 v6, 0x1000, v5")
    a("v_lshrrev_b32 v12, 5, v1")
    a("v_lshlrev_b32 v12, 3, v12")
    a("v_bfe_u32 v13, v1, 2, 2")
    a("v_add_u32 v12, v12, v13")
    a("v_lshlrev_b32 v12, 7, v12")
    a("v_bfe_u32 v13, v1, 3, 1")
    a("v_lshl_add_u32 v12, v13, 6, v12")
    a("v_bfe_u32 v13, v1, 4, 1")
    a("v_lshl_add_u32 v12, v13, 5, v12")
    a("v_and_b32 v13, 3, v1")
    a("v_lshl_add_u32 v2, v13, 3, v12")
    a("v_xor_b32 v3, 64, v2")
    a("v_mov_b32 v8, 0")
    a("v_add_u32 v103, 0x400, v5")
    a("s_mov_b32 s33, 0x10000000")
    def epi(acc, pk, voffs, soff):
        ops = []
        for g in range(2):
            for i in range(4):
                ops.append(f"v_cvt_pk_bf16_f32 v{pk+4*g+i}, v{acc+8*g+2*i}, v{acc+8*g+2*i+1}")
            ops.append(f"buffer_store_dwordx4 {vr(pk+4*g,4)}, {voffs[g]}, s[16:19], {soff} offen sc0 sc1")
        return ops

    def seq(full):
        s = []
        for stg in range(2):
            for nb in ((0, 1) if full else (0,)):
                for tt in range(16):
                    s.append((stg, nb, stg * 16 + tt))
        return s
    def rd(fr, slotidx, nextchunk=False):
        stg, nb, t = fr
        slot = FR + 4 * (slotidx % R)
        base = ("v2" if nb == 0 else "v3") if not nextchunk else ("v100" if nb == 0 else "v101")
        off = stg * 32768 + (t % 16) * 2048
        a(f"ds_read_b64_tr_b16 {vr(slot,2)}, {base} offset:{off}")
        a(f"ds_read_b64_tr_b16 {vr(slot+2,2)}, {base} offset:{off+512}")

    def offs(isV):
        for nb, sg in ((0, 50), (1, 51)):
            a(f"s_add_u32 s27, s49, {32*nb}")
            a(f"s_lshr_b32 s{sg}, s27, 7")
            a(f"s_lshl_b32 s{sg}, s{sg}, 19")
            a("s_and_b32 s27, s27, 127")
            a(f"s_lshl_b32 s27, s27, {5 if isV else 6}")
            a(f"s_add_u32 s{sg}, s{sg}, s27")
            a(f"s_add_u32 s{sg}, s{sg}, {WS_VT if isV else 's29'}")
        return ("v5", "v6") if isV else ("v5", "v103")
    def mfma(isV, nb, t, slot):
        acc = vr(ACC[nb], 16)
        cin = "0" if t == 0 else acc
        if isV: a(f"v_mfma_f32_32x32x16_bf16 {acc}, {ar(4*t,4)}, {vr(slot,4)}, {cin}")
        else: a(f"v_mfma_f32_32x32x16_bf16 {acc}, {vr(slot,4)}, {ar(4*t,4)}, {cin}")
    a("s_and_b32 s49, s30, 127")
    a("s_lshl_b32 s49, s49, 5")
    a("s_waitcnt vmcnt(16)")
    a("s_barrier")
    a("s_cmp_ge_u32 s30, 128")
    a("s_cbranch_scc1 " + name + "_firstV")
    def first(isV):
        voff = offs(isV)
        for p in range(8):
            a(f"s_waitcnt vmcnt({12 if p == 0 else 4*min(2, 7-p)})")
            if p == 4: a("s_barrier")
            for b in range(4):
                a(f"ds_read_b128 {ar(16*p+4*b,4)}, v{96+b} offset:{(p%3)*4096}")
            fr = [(p // 4, nb, 4 * p + b) for b in range(4) for nb in range(2)]
            for f in range(4): rd(fr[f], f)
            a("s_waitcnt lgkmcnt(8)")
            if p + 3 < 8: dma_x(p + 3)
            for f in range(8):
                if f + 4 < 8: rd(fr[f + 4], f + 4)
                a(f"s_waitcnt lgkmcnt({2*min(4, 7-f)})")
                mfma(isV, fr[f][1], fr[f][2], FR + 4 * f)
        a("s_barrier")
        for st in range(2):
            dma_w_setup()
            for q in range(4):
                for op in dma_w(q): a(op)
        for op in epi(ACC[0], PK[0], voff, "s50"): a(op)
        a(f"v_mov_b32 v8, {voff[1]}")
        a("s_mov_b32 s33, s51")
    first(False)
    a("s_branch " + name + "_firstd")
    a.label(name + "_firstV")
    first(True)
    a.label(name + "_firstd")
    dma_w_setup()
    for q in range(4):
        for op in dma_w(q): a(op)
    a("s_mov_b32 s27, 0x10000000")
    a("buffer_store_dwordx4 v[80:83], v5, s[16:19], s27 offen")
    a("buffer_store_dwordx4 v[80:83], v5, s[16:19], s27 offen")
    a("v_xor_b32 v2, 0x10000, v2")
    a("v_xor_b32 v3, 0x10000, v3")
    a("s_add_u32 s66, s66, 1")
    a("s_add_u32 s30, s30, s68")
    a("s_cmp_ge_u32 s66, s64")
    a("s_cselect_b32 s30, s69, s30")
    dma_w_setup()
    a("s_waitcnt vmcnt(12)")
    a("s_barrier")
    S = seq(True)
    for f in range(P): rd(S[f], f)
    a.label(name + "_loop")
    a("v_xor_b32 v100, 0x10000, v2")
    a("v_xor_b32 v101, 0x10000, v3")
    a("s_cmp_ge_u32 s30, 128")
    a("s_cbranch_scc1 " + name + "_bodyV")
    a("s_cmp_ge_u32 s66, s64")
    a("s_cbranch_scc1 " + name + "_bodyH")

    def body(isV, full, first_barrier_skipped=False):
        offops = ["s_and_b32 s49, s30, 127", "s_lshl_b32 s49, s49, 5"]
        for nb, sg in ((0, 50), (1, 51)):
            offops += [f"s_add_u32 s28, s49, {32*nb}", f"s_lshr_b32 s{sg}, s28, 7", f"s_lshl_b32 s{sg}, s{sg}, 19",
                       "s_and_b32 s28, s28, 127", f"s_lshl_b32 s28, s28, {5 if isV else 6}",
                       f"s_add_u32 s{sg}, s{sg}, s28", f"s_add_u32 s{sg}, s{sg}, {WS_VT if isV else 's29'}"]
        voff = ("v5", "v6") if isV else ("v5", "v103")
        S = seq(full)
        n = len(S)
        half = n // 2
        extra = {}
        def put(pos, ops):
            for i, op in enumerate(ops): extra.setdefault(pos + i // 2, []).append(op)
        for stg in range(2):
            st0 = stg * half
            for q in range(4):
                extra.setdefault(st0 + DMAPOS[q], []).extend(dma_w(q))
        put(14 if full else 13, offops)
        for stg in range(2):
            extra.setdefault(stg * half + (half - 3), []).extend(dma_w_setup_ops())
        put(8, epi(ACC[1], PK[1], ("v5", "v8"), "s33"))
        if full:
            put(48 + 5, epi(ACC[0], PK[0], voff, "s50"))
        for f in range(n):
            stg, nb, t = S[f]
            if f % half == 0:
                a("s_waitcnt vmcnt(8)")
                a("s_barrier")
            if f + P < n: rd(S[f + P], f + P)
            elif full: rd(S[f + P - n], f + P, nextchunk=True)
            rem = P if full else min(P, n - 1 - f)
            a(f"s_waitcnt lgkmcnt({2*rem})")
            slot = FR + 4 * (f % R)
            acc = vr(ACC[nb], 16)
            cin = "0" if t == 0 else acc
            if isV:
                a(f"v_mfma_f32_32x32x16_bf16 {acc}, {ar(4*t,4)}, {vr(slot,4)}, {cin}")
            else:
                a(f"v_mfma_f32_32x32x16_bf16 {acc}, {vr(slot,4)}, {ar(4*t,4)}, {cin}")
            for op in extra.get(f, []): a(op)
        if full:
            a(f"v_mov_b32 v8, {voff[1]}")
            a("s_mov_b32 s33, s51")
            a("s_branch " + name + "_next")
        else:
            a("s_nop 15")
            for op in epi(ACC[0], PK[0], voff, "s50"): a(op)
            a("s_branch " + name + "_done")
    body(False, True)
    a.label(name + "_bodyH")
    body(False, False)
    a.label(name + "_bodyV")
    body(True, True)
    a.label(name + "_next")
    a("v_mov_b32 v2, v100")
    a("v_mov_b32 v3, v101")
    a("s_add_u32 s66, s66, 1")
    a("s_add_u32 s30, s30, s68")
    a("s_cmp_ge_u32 s66, s64")
    a("s_cselect_b32 s30, s69, s30")
    a("s_cmp_lt_u32 s66, s65")
    a("s_cbranch_scc1 " + name + "_loop")
    a("s_nop 15")
    for op in epi(ACC[1], PK[1], ("v5", "v8"), "s33"): a(op)
    a.label(name + "_done")
    a("s_endpgm")
    return kernel_desc(name, 256, 128)

if __name__ == "__main__":
    a = Asm()
    a.raw("; @launch kernel=qkv_kernel grid=(256,1,1) block=(512,1,1) lds=163840")
    a.raw('.amdgcn_target "amdgcn-amd-amdhsa--gfx950"')
    a.raw(".text")
    d = gen_gemm1(a)
    a.raw('.section .rodata,"a"')
    a.raw(d)
    open("g1.s", "w").write(a.text())
```
